```python
import torch

def _softmax(x, axis=-1):
    return torch.softmax(x, dim=axis)
def _gelu(x):
    return torch.nn.functional.gelu(x, approximate="tanh")
def _silu(x):
    return torch.nn.functional.silu(x)
def _sigmoid(x):
    return torch.sigmoid(x)
def _layernorm(x, axis=-1, eps=1e-5):
    m = x.mean(dim=axis, keepdim=True)
    v = x.var(dim=axis, keepdim=True, unbiased=False)
    return (x - m) / torch.sqrt(v + eps)
def _scatter_add(tgt, idx, src, axis=0):
    return tgt.clone().index_add_(axis, idx, src)
def _segment_sum(src, seg, n):
    out = torch.zeros((n,) + src.shape[1:], dtype=src.dtype)
    return out.index_add_(0, seg, src)
def _pad(x, pw):
    flat = tuple(v for pair in reversed(pw) for v in pair)
    return torch.nn.functional.pad(x, flat)

kernel_name = 'standalone__gqa_softmax__near_ridge'

def setup_inputs():

    _w = (lambda a: (lambda t: t.to(torch.bfloat16) if t.is_floating_point() else t)(torch.as_tensor(a)))
    B, Hq, Hkv, Sq, Sk, D = 8, 32, 8, 384, 384, 128
    return {
        "q": _w((lambda *s: torch.randn(*s, dtype=torch.bfloat16) * 0.8)(B, Hq, Sq, D)),
        "k": _w((lambda *s: torch.randn(*s, dtype=torch.bfloat16) * 0.8)(B, Hkv, Sk, D)),
        "v": _w((lambda *s: torch.randn(*s, dtype=torch.bfloat16) * 0.05)(B, Hkv, Sk, D)),
    }

def reference(q, k, v):
    B, Hq, Sq, D = q.shape
    Hkv = k.shape[1]
    rep = Hq // Hkv
    k = (lambda x, n, axis: torch.repeat_interleave(x, n, dim=axis))(k, rep, axis=1)
    v = (lambda x, n, axis: torch.repeat_interleave(x, n, dim=axis))(v, rep, axis=1)
    scale = D ** -0.5
    scores = torch.einsum("bhqd,bhkd->bhqk", q, k) * scale
    p = _softmax(scores, axis=-1)
    return torch.einsum("bhqk,bhkd->bhqd", p, v)
```

```python
import re

def regs(prefix, start, n=1):
    return [f'{prefix}{start + i}' for i in range(n)]

def rng(prefix, start, n):
    return f'{prefix}{start}' if n == 1 else f'{prefix}[{start}:{start + n - 1}]'

class I:
    __slots__ = ('text', 'kind', 'rd', 'wr', 'srcc', 'w', 'tok_w', 'tok_r', 'lgkm', 'vm', 'ph', 'note', 'size')
    def __init__(self, text, kind, rd=(), wr=(), srcc=(), w=None, tok_w=(), tok_r=(), note=''):
        self.text = text; self.kind = kind
        self.rd = set(rd); self.wr = set(wr); self.srcc = set(srcc)
        self.tok_w = set(tok_w); self.tok_r = set(tok_r)
        if w is None:
            w = {'trans': 2}.get(kind, 1)
        self.w = w
        self.lgkm = None; self.vm = None; self.ph = False
        self.note = note
    def __repr__(self):
        return f'<{self.kind}: {self.text}>'

def R(x):
    x = x.strip()
    if x.startswith('-'): x = x[1:]
    m = re.fullmatch(r'([vas])\[(\d+):(\d+)\]', x)
    if m: return [f'{m.group(1)}{i}' for i in range(int(m.group(2)), int(m.group(3)) + 1)]
    m = re.fullmatch(r'([vas])(\d+)', x)
    if m: return [x]
    if x in ('vcc',): return ['vcc']
    if x in ('m0',): return ['m0']
    if x in ('exec',): return ['exec']
    return []

def valu(op, dst, *srcs, kind=None, mods=''):
    rd = []
    for s in srcs: rd += R(s)
    wr = R(dst)
    k = kind or ('trans' if re.match(r'v_(exp|rcp|log|rsq|sqrt)_', op) else 'valu')
    t = f'{op} {dst}, ' + ', '.join(srcs) + (' ' + mods if mods else '')
    return I(t, k, rd, wr)

def perm32(a, b):
    return I(f'v_permlane32_swap_b32 {a}, {b}', 'perm', R(a) + R(b), R(a) + R(b))

def salu(op, dst, *srcs, scc=True):
    rd = []
    for s in srcs: rd += R(s)
    t = f'{op} {dst}' + (', ' + ', '.join(srcs) if srcs else '')
    if op in ('s_addc_u32', 's_subb_u32'): rd.append('scc')
    return I(t, 'salu', rd, R(dst) + (['scc'] if scc else []))

def mfma(d, a, b, c):
    rd = R(a) + R(b) + R(c)
    return I(f'v_mfma_f32_32x32x16_bf16 {d}, {a}, {b}, {c}', 'mfma', rd, R(d), srcc=R(c), w=2)

def ds_read(op, dst, addr, off, tok_r=()):
    assert 0 <= off < 65536, off
    return I(f'{op} {dst}, {addr}' + (f' offset:{off}' if off else ''), 'ds_r', R(addr), R(dst), tok_r=tok_r)

def ds_write(op, addr, src, off, tok_w=(), w=2):
    assert 0 <= off < 65536, off
    return I(f'{op} {addr}, {src}' + (f' offset:{off}' if off else ''), 'ds_w', R(addr) + R(src), [], tok_w=tok_w, w=w)

def buf_load(dst, voff, srd, soff, off, mods=''):
    assert 0 <= off < 4096
    return I(f'buffer_load_dwordx4 {dst}, {voff}, {srd}, {soff} offen' + (f' offset:{off}' if off else '') + (' ' + mods if mods else ''),
             'vm_l', R(voff) + R(srd) + R(soff), R(dst))

def buf_dma(voff, srd, soff, off, tok, mods=''):
    assert 0 <= off < 4096
    return I(f'buffer_load_dwordx4 {voff}, {srd}, {soff} offen' + (f' offset:{off}' if off else '') + (' ' + mods if mods else '') + ' lds',
             'dma', R(voff) + R(srd) + R(soff) + ['m0'], [], tok_w=[tok])

def buf_store(src, voff, srd, soff, off, mods=''):
    assert 0 <= off < 4096
    return I(f'buffer_store_dwordx4 {src}, {voff}, {srd}, {soff} offen' + (f' offset:{off}' if off else '') + (' ' + mods if mods else ''),
             'vm_s', R(src) + R(voff) + R(srd) + R(soff), [])

def placeholder():
    i = I('', 'wait'); i.ph = True
    return i

def wait(vm=None, lgkm=None):
    i = I('', 'wait'); i.vm = vm; i.lgkm = lgkm
    return i

def nop(n):
    return I(f's_nop {n - 1}', 'nop', w=n)

def barrier(tok_r=()):
    return I('s_barrier', 'barrier', tok_r=tok_r)

def label(name):
    return I(f'{name}:', 'label')

def raw(text, kind='salu', rd=(), wr=()):
    return I(text, kind, rd, wr)

def wait_text(i):
    p = []
    if i.vm is not None: p.append(f'vmcnt({i.vm})')
    if i.lgkm is not None: p.append(f'lgkmcnt({i.lgkm})')
    return 's_waitcnt ' + ' '.join(p)

def insert_waits(L, log=None):
    out = []
    dsq = []
    vmq = []
    phs = []
    forced = 0
    def count_after(q, pos_in_q, upto_out_idx):
        return sum(1 for e in q[pos_in_q + 1:] if e[1] < upto_out_idx)
    for ins in L:
        if ins.kind == 'wait' and not ins.ph:
            if ins.lgkm is not None:
                while len(dsq) > ins.lgkm: dsq.pop(0)
            if ins.vm is not None:
                while len(vmq) > ins.vm: vmq.pop(0)
            out.append(ins); continue
        if ins.kind == 'wait' and ins.ph:
            phs.append(len(out)); out.append(ins); continue
        if ins.kind == 'label':
            out.append(ins); continue
        touched = ins.rd | ins.wr
        for q, field, maxc in ((dsq, 'lgkm', 15), (vmq, 'vm', 63)):
            need = -1
            for k, (p, idx) in enumerate(q):
                if (p.wr & touched) or (p.tok_w & ins.tok_r):
                    if p.kind == 'ds_r' and ins.kind in ('ds_r', 'ds_w') and not (p.wr & ins.rd) and not (p.tok_w & ins.tok_r):
                        continue
                    need = k
            if need < 0: continue
            pidx = q[need][1]
            h = phs[-1] if phs and phs[-1] > pidx else None
            if h is not None:
                c = min(count_after(q, need, h), maxc)
                ph = out[h]
                cur = getattr(ph, field)
                setattr(ph, field, c if cur is None else min(cur, c))
                before = [e for e in q if e[1] < h]
                done = len(before) - c
                del q[:done]
            else:
                c = min(len(q) - need - 1, maxc)
                w = wait(**{field: c}); w.note = 'forced'
                out.append(w); forced += 1
                if log is not None: log.append(f'forced wait {field}({c}) before {ins.text}')
                del q[:len(q) - c]
        if ins.kind in ('ds_r', 'ds_w'):
            dsq.append([ins, len(out)])
        if ins.kind in ('vm_l', 'vm_s', 'dma'):
            vmq.append([ins, len(out)])
            assert len(vmq) <= 63, 'too many outstanding vmem ops'
        out.append(ins)
    res = []
    for i in out:
        if i.kind == 'wait':
            if i.vm is None and i.lgkm is None: continue
            i.text = wait_text(i)
        res.append(i)
    return res, forced

VALUK = ('valu', 'trans', 'perm')
def states(i):
    if i.kind == 'label': return 0
    if i.kind == 'nop': return i.w
    return 1

def required(p, c):
    n = 0
    vw = {r for r in p.wr if r[0] in 'va' and r != 'vcc'}
    if p.kind in VALUK:
        if c.kind == 'mfma' and (vw & c.rd): n = max(n, 2)
        if c.kind == 'perm' and (vw & c.rd): n = max(n, 2)
        if p.kind == 'trans' and c.kind in ('valu', 'perm') and (vw & c.rd): n = max(n, 1)
        if p.kind == 'trans' and c.kind in ('ds_w', 'vm_s', 'ds_r', 'vm_l', 'dma') and (vw & c.rd): n = max(n, 1)
        if 'readfirstlane' in c.text and (vw & c.rd): n = max(n, 1)
        sw = {r for r in p.wr if r[0] == 's' or r == 'vcc'}
        if sw:
            if c.kind in VALUK and (sw & c.rd): n = max(n, 2)
            if c.kind in ('vm_l', 'vm_s', 'dma') and (sw & c.rd): n = max(n, 5)
    if p.kind == 'mfma':
        d = p.wr
        if c.kind == 'mfma':
            if d & (c.rd - c.srcc): n = max(n, 12)
            if d & c.srcc and d != c.srcc: n = max(n, 10)
        elif c.kind in VALUK + ('ds_r', 'ds_w', 'vm_l', 'vm_s', 'dma'):
            if d & (c.rd | c.wr): n = max(n, 12)
        if c.kind in VALUK and (p.srcc & c.wr): n = max(n, 7)
    if p.kind == 'vm_s' and (p.rd & c.wr):
        n = max(n, 2)
    if p.kind == 'ds_w' and c.kind in VALUK and (p.rd & c.wr):
        n = max(n, 2)
    if p.kind == 'salu' and 'm0' in p.wr and c.kind == 'dma': n = max(n, 1)
    return n

def fix_hazards(L, log=None):
    out = []
    added = 0
    for c in L:
        if c.kind in ('label', 'wait', 'nop', 'barrier'):
            out.append(c); continue
        need = 0
        dist = 0
        for p in reversed(out):
            if dist >= 12: break
            r = required(p, c)
            if r > dist: need = max(need, r - dist)
            dist += states(p)
        if need:
            out.append(nop(need)); added += need
            if log is not None: log.append(f'nop {need} before {c.text}')
        out.append(c)
    return out, added

def render(L):
    s = []
    for i in L:
        if i.kind == 'label': s.append(i.text)
        else: s.append('  ' + i.text + (f'  ; {i.note}' if i.note else ''))
    return '\n'.join(s) + '\n'
```

```python
import sys, struct, math
sys.path.insert(0, 'gen')
from core import *

KNAME = 'standalone__gqa_softmax__near_ridge_kernel'

DEFAULT = dict(
    pre=3,
    qb_start=4,
    store_mods='',
    q_mods='', kv_mods='',
    code_prefetch=True, pf_max=0x6000,
    slow=True,
    stamps=False,
    thresh=0x47800000,
)

S_Q, S_K, S_V, S_O, S_V2 = 's[4:7]', 's[8:11]', 's[12:15]', 's[16:19]', 's[36:39]'
S_C = 's20'; S_W2K = 's21'; S_WAVE = 's22'; S_NC = 's23'
S_RET = 's[32:33]'
S_QB = ['0', 's40', 's41']
def S_ST(b, j): return f's{44 + 4 * b + j}'
V_AK = 1
V_AV = 9
V_AL = 13
V_AL2 = 17
V_KOFF0, V_KOFF1, V_VOFF, V_QOFF = 21, 22, 23, 24
V_OOFF = 25
V_L = 26
V_MC = 30
V_T = 32
V_LT = 40
V_PF = 42
V_SS = 48
V_SP = 64
V_SM = 72
V_P = 80
V_S = 96
V_O = [128, 192]
A_KR = 0; A_Q = [128, 160]; A_RING = 192; A_W = 224; A_SF = 232

LDS_V = 0x18000
def kslot(i): return i * 0x2000
def vslot(i): return LDS_V + i * 0x2000 if i < 8 else (i - 8) * 0x2000

def v(n, c=1): return rng('v', n, c)
def a(n, c=1): return rng('a', n, c)

C_SCALE = 128 ** -0.5 * math.log2(math.e)
def f32(x): return struct.unpack('<I', struct.pack('<f', x))[0]

class Gap:
    def __init__(self, m=None, cap=6, name=''):
        self.m = m; self.cap = cap; self.sc = []; self.mem = []; self.va = []; self.ph = False; self.name = name
        self.post = []
    def used(self):
        return sum(i.w for i in self.mem) + sum(i.w for i in self.va) + max(0, len(self.sc) + (1 if self.ph else 0) - 1)

class Item:
    def __init__(self, ins, rel, dl, deps=(), sep=0):
        self.ins = ins if isinstance(ins, list) else [ins]
        self.rel = rel; self.dl = dl; self.deps = list(deps); self.gap = None; self.sep = sep
        self.w = sum(i.w for i in self.ins)

def schedule(gaps, items, log):
    pend = sorted(items, key=lambda it: (it.dl, it.rel))
    for g, gap in enumerate(gaps):
        progress = True
        while progress:
            progress = False
            for it in pend:
                if it.rel > g: continue
                ok = all(d.gap is not None and d.gap + dist <= g for d, dist in it.deps)
                if not ok: continue
                room = gap.cap - gap.used()
                if it.w <= room or it.dl <= g:
                    gap.va += it.ins; it.gap = g; pend.remove(it); progress = True
                    break
                else:
                    continue
    if pend:
        raise RuntimeError(f'unscheduled: {[(it.ins, it.rel, it.dl) for it in pend[:5]]}')

def gen(opt):
    o = dict(DEFAULT); o.update(opt)
    log = []
    P = []
    e = P.append
    e(raw('s_cmp_ge_u32 s2, 0x100'))
    e(raw('s_cbranch_scc1 L_END', 'branch'))
    e(raw('s_load_dwordx8 s[24:31], s[0:1], 0', 'smem', wr=regs('s', 24, 8)))
    if o['stamps']:
        e(raw('s_load_dwordx2 s[60:61], s[0:1], 40', 'smem'))
        e(raw('s_memrealtime s[62:63]', 'smem'))
    e(valu('v_lshrrev_b32', v(32), '6', 'v0'))
    e(valu('v_and_b32', v(33), '63', 'v0'))
    e(salu('s_and_b32', 's3', 's2', '7'))
    e(raw(f'v_readfirstlane_b32 {S_WAVE}, v32', 'valu', rd=['v32'], wr=[S_WAVE]))
    e(salu('s_lshr_b32', 's34', 's2', '5'))
    e(salu('s_lshl_b32', 's34', 's34', '3'))
    e(salu('s_or_b32', 's3', 's3', 's34'))
    e(salu('s_bfe_u32', 's34', 's2', '0x20003'))
    e(salu('s_lshl_b32', 's35', 's3', '2'))
    e(salu('s_or_b32', 's34', 's34', 's35'))
    e(salu('s_mul_i32', 's3', 's3', '0x18000', scc=False))
    e(salu('s_mul_i32', 's34', 's34', '0x18000', scc=False))
    e(valu('v_lshrrev_b32', v(34), '4', v(33)))
    e(valu('v_and_b32', v(35), '15', v(33)))
    e(valu('v_and_b32', v(36), '1', v(32)))
    e(valu('v_lshl_or_b32', v(36), v(36), '3', v(34)))
    e(valu('v_xor_b32', v(37), v(35), v(36)))
    e(valu('v_lshlrev_b32', v(38), '8', v(34)))
    e(valu('v_lshl_or_b32', v(V_KOFF0), v(37), '4', v(38)))
    e(valu('v_xor_b32', v(V_KOFF1), '64', v(V_KOFF0)))
    e(salu('s_lshl_b32', S_W2K, S_WAVE, '11'))
    e(salu('s_mov_b32', 's10', '0x18000', scc=False))
    e(salu('s_mov_b32', 's11', '0x20000', scc=False))
    e(salu('s_mov_b32', 'm0', S_W2K, scc=False))
    e(valu('v_and_b32', v(39), '31', v(33)))
    e(valu('v_lshl_or_b32', v(39), v(32), '5', v(39)))
    e(valu('v_lshrrev_b32', v(41), '5', v(33)))
    e(valu('v_lshlrev_b32', v(40), '4', v(41)))
    e(valu('v_lshl_or_b32', v(V_QOFF), v(39), '8', v(40)))
    e(salu('s_mov_b32', 's6', '0x18000', scc=False))
    e(salu('s_mov_b32', 's7', '0x20000', scc=False))
    e(wait(lgkm=0))
    e(salu('s_add_u32', 's8', 's26', 's3'))
    e(salu('s_addc_u32', 's9', 's27', '0'))
    e(salu('s_add_u32', 's4', 's24', 's34'))
    e(salu('s_addc_u32', 's5', 's25', '0'))

    def dma_k(i):
        return [salu('s_add_u32', 'm0', S_W2K, hex(kslot(i))),
                buf_dma(v(V_KOFF0), S_K, 'm0', 0, f'K{i}', o['kv_mods']),
                buf_dma(v(V_KOFF1), S_K, 'm0', 1024, f'K{i}', o['kv_mods'])]
    def dma_v(i):
        srd = S_V if i < 8 else S_V2
        return [salu('s_add_u32', 'm0', S_W2K, hex(vslot(i))),
                buf_dma(v(V_VOFF), srd, 'm0', 0, f'V{i}', o['kv_mods']),
                buf_dma(v(V_VOFF), srd, 'm0', 1024, f'V{i}', o['kv_mods'])]
    def q_load(b, s):
        return buf_load(a(A_Q[b & 1] + 4 * s, 4), v(V_QOFF), S_Q, S_QB[b], 32 * s, o['q_mods'])

    for x in dma_k(0)[1:]: e(x)
    for x in dma_k(1): e(x)
    for s in range(8): e(q_load(0, s))
    e(valu('v_lshlrev_b32', v(36), '2', v(34)))
    e(valu('v_xor_b32', v(37), v(35), v(36)))
    e(valu('v_lshl_or_b32', v(V_VOFF), v(37), '4', v(38)))
    e(salu('s_add_u32', 's36', 's28', 's3'))
    e(salu('s_addc_u32', 's37', 's29', '0'))
    e(salu('s_sub_u32', 's12', 's36', hex(LDS_V)))
    e(salu('s_subb_u32', 's13', 's37', '0'))
    e(salu('s_mov_b32', 's14', '0x30000', scc=False))
    e(salu('s_mov_b32', 's15', '0x20000', scc=False))
    e(salu('s_add_u32', 's36', 's36', '0x10000'))
    e(salu('s_addc_u32', 's37', 's37', '0'))
    e(salu('s_mov_b32', 's38', '0x8000', scc=False))
    e(salu('s_mov_b32', 's39', '0x20000', scc=False))
    pre = o['pre']
    kn, vn = 2, 0
    for i in range(pre):
        for x in dma_v(vn): e(x)
        vn += 1
        for x in dma_k(kn): e(x)
        kn += 1
    if o['code_prefetch']:
        e(raw('s_getpc_b64 s[56:57]', 'salu', wr=['s56', 's57']))
        e(valu('v_lshlrev_b32', v(V_PF + 1), '7', 'v0'))
        e(valu('v_min_u32', v(V_PF + 1), hex(o['pf_max']), v(V_PF + 1)))
        e(raw(f'global_load_dword {v(V_PF)}, {v(V_PF + 1)}, s[56:57]', 'vm_l', rd=[v(V_PF + 1), 's56', 's57'], wr=[v(V_PF)]))
    e(salu('s_add_u32', 's16', 's30', 's34'))
    e(salu('s_addc_u32', 's17', 's31', '0'))
    e(salu('s_mov_b32', 's18', '0x18000', scc=False))
    e(salu('s_mov_b32', 's19', '0x20000', scc=False))
    e(salu('s_mov_b32', S_C, hex(f32(C_SCALE)), scc=False))
    e(salu('s_mov_b32', S_NC, hex(f32(-C_SCALE)), scc=False))
    e(salu('s_mov_b32', 's40', '0x8000', scc=False))
    e(salu('s_mov_b32', 's41', '0x10000', scc=False))
    for j in range(4):
        e(salu('s_xor_b32', 's35', S_WAVE, str(j)))
        e(salu('s_lshl_b32', S_ST(0, j), 's35', '6'))
        e(salu('s_add_u32', S_ST(1, j), S_ST(0, j), '0x8000'))
        e(salu('s_add_u32', S_ST(2, j), S_ST(0, j), '0x10000'))
    e(valu('v_mov_b32', v(V_OOFF), v(V_QOFF)))
    e(valu('v_and_b32', v(36), '31', v(33)))
    e(valu('v_xor_b32', v(37), v(41), v(35)))
    e(valu('v_lshlrev_b32', v(37), '4', v(37)))
    e(valu('v_lshl_or_b32', v(V_AK), v(36), '8', v(37)))
    for s in range(1, 8):
        e(valu('v_xor_b32', v(V_AK + s), hex(s << 5), v(V_AK)))
    e(valu('v_and_b32', v(36), '3', v(33)))
    e(valu('v_bfe_u32', v(37), v(33), '2', '2'))
    e(valu('v_bfe_u32', v(38), v(33), '4', '1'))
    e(valu('v_lshl_or_b32', v(39), v(41), '2', v(37)))
    e(valu('v_lshlrev_b32', v(39), '8', v(39)))
    e(valu('v_lshl_or_b32', v(39), v(38), '5', v(39)))
    e(valu('v_lshl_or_b32', v(39), v(36), '3', v(39)))
    e(valu('v_xor_b32', v(37), v(37), v(32)))
    e(valu('v_lshl_or_b32', v(39), v(37), '6', v(39)))
    e(valu('v_add_u32', v(V_AV), hex(LDS_V), v(39)))
    for j in range(1, 4):
        e(valu('v_xor_b32', v(V_AV + j), hex(j << 6), v(V_AV)))
    e(valu('v_lshlrev_b32', v(36), '4', v(33)))
    e(valu('v_lshl_or_b32', v(V_AL2), v(32), '10', v(36)))
    for j in range(1, 4):
        e(valu('v_xor_b32', v(V_AL2 + j), hex(j << 10), v(V_AL2)))
    for j in range(4):
        e(valu('v_add_u32', v(V_AL + j), hex(LDS_V), v(V_AL2 + j)))
    e(barrier(tok_r=['K0', 'K1']))

    def kfrag_reg(t, s):
        i = t % 12
        return a(A_KR + 32 * i + 4 * s, 4) if i < 4 else a(A_RING + 4 * s, 4)
    def k_read(t, s):
        i = t % 12
        if i < 4:
            if t >= 12: return None
            return ds_read('ds_read_b128', kfrag_reg(t, s), v(V_AK + s), kslot(i))
        return ds_read('ds_read_b128', kfrag_reg(t, s), v(V_AK + s), kslot(i) - 0x8000)
    def vfrag_reg(t, y):
        j, ks = y & 3, y >> 2
        if t < 12 and j == 0: return A_W + 4 * ks
        return A_RING + 4 * y
    def v_reads(t, y):
        i = t % 12; j, ks = y & 3, y >> 2
        r = vfrag_reg(t, y)
        if t < 12:
            base = (i if i < 8 else i - 8) * 0x2000
            return [ds_read('ds_read_b64_tr_b16', a(r + 2 * u, 2), v(V_AV + j), base + (16 * ks + 8 * u) * 256) for u in range(2)]
        al = V_AL if i < 8 else V_AL2
        base = (i if i < 8 else i - 8) * 0x2000
        return [ds_read('ds_read_b128', a(r, 4), v(al + j), base + ks * 4096)]
    def w_write(t, ks):
        i = t
        al = V_AL if i < 8 else V_AL2
        base = (i if i < 8 else i - 8) * 0x2000
        return ds_write('ds_write_b128', v(al), a(A_W + 4 * ks, 4), base + ks * 4096, tok_w=[f'VL{i}'])
    def Sreg(t): return V_S + 16 * (t & 1)
    def Preg(t): return V_P + 8 * (t & 1)
    def qk_mfma(t, s):
        b = t // 12
        S = v(Sreg(t), 16)
        return mfma(S, kfrag_reg(t, s), a(A_Q[b & 1] + 4 * s, 4), '0' if s == 0 else S)
    def pv_mfma(t, y):
        b = t // 12; j, ks = y & 3, y >> 2
        O = v(V_O[b & 1] + 16 * j, 16)
        c = '0' if (t % 12 == 0 and ks == 0) else O
        return mfma(O, a(vfrag_reg(t, y), 4), v(Preg(t) + 4 * ks, 4), c)

    gaps = []
    G = {}
    def add_gap(key, m, cap=6):
        g = Gap(m, cap, name=str(key)); G[key] = len(gaps); gaps.append(g); return g
    g0 = add_gap(('pre', 0), None, cap=99)
    for s in range(8): g0.mem.append(k_read(0, s))
    g0.post.append(placeholder())
    for s in range(8):
        g = add_gap((-1, 8 + s), qk_mfma(0, s))
        g.mem.append(k_read(1, s))
        g.ph = (s & 1) == 1
    gaps[G[(-1, 15)]].sc += [barrier(tok_r=['V0', 'K2'])]
    gaps[G[(-1, 15)]].ph = True
    for x in range(8):
        g = add_gap((0, x), qk_mfma(1, x))
        g.mem += v_reads(0, x)
        g.ph = (x & 1) == 1
    for x in range(8, 16):
        g = add_gap((0, x), None, cap=8)
        g.ph = (x == 15)
    for t in range(1, 37):
        for x in range(16):
            if t == 36: break
            if t == 35 and x >= 8: break
            if x < 8:
                g = add_gap((t, x), pv_mfma(t - 1, x))
                if t + 1 <= 35:
                    r = k_read(t + 1, x)
                    if r: g.mem.append(r)
                if t == 35:
                    g.mem += v_reads(35, x)
            else:
                g = add_gap((t, x), qk_mfma(t + 1, x - 8))
                g.mem += v_reads(t, x - 8)
            g.ph = (x & 1) == 1
    for x in range(8, 12):
        g = add_gap((35, x), pv_mfma(35, x - 8)); g.ph = True
    for x in range(12, 14):
        g = add_gap((35, x), None, cap=8); g.ph = True
    for x in range(14, 18):
        g = add_gap((35, x), pv_mfma(35, x - 10)); g.ph = True
    NT = 40
    for x in range(18, 18 + NT):
        g = add_gap((35, x), None, cap=8)

    def GG(t, x):
        while (t, x) not in G:
            if x >= 16 and t < 35: t += 1; x -= 16
            else: raise KeyError((t, x))
        return G[(t, x)]

    for t in range(1, 14):
        toks = []
        if t <= 11: toks.append(f'V{t}')
        if t + 2 <= 11: toks.append(f'K{t + 2}')
        if t >= 2: toks.append(f'VL{t - 2}')
        g = gaps[G[(t, 7)]]
        g.sc.append(barrier(tok_r=toks)); g.ph = True
        if t - 1 <= 11:
            g.mem.append(w_write(t - 1, 0))
            gaps[G[(t, 9)]].mem.insert(0, w_write(t - 1, 1))
    for t in range(0, 12):
        if kn <= 11:
            d = dma_k(kn); kn += 1
            gaps[G[(t, 2)]].sc.append(d[0]); gaps[G[(t, 3)]].mem.append(d[1]); gaps[G[(t, 4)]].mem.append(d[2])
        if vn <= 11 and (vn < 8 or t >= vn - 8 + 1 or t >= 4):
            d = dma_v(vn); vn += 1
            gaps[G[(t, 10)]].sc.append(d[0]); gaps[G[(t, 11)]].mem.append(d[1]); gaps[G[(t, 12)]].mem.append(d[2])
    assert kn == 12 and vn == 12
    for s in range(8):
        t = o['qb_start'] + s // 2
        gaps[G[(t, 6 if s % 2 == 0 else 14)]].mem.append(q_load(1, s))

    items = []
    for s in range(8):
        items.append(Item(valu('v_add_u32', v(V_AK + s), '0x8000', v(V_AK + s)), GG(2, 8), GG(2, 15)))
    for j in range(4):
        items.append(Item(valu('v_subrev_u32', v(V_AV + j), hex(LDS_V), v(V_AV + j)), GG(8, 0), GG(8, 6)))

    lastA = {}
    hard = []
    for t in range(36):
        b, i = t // 12, t % 12
        S = Sreg(t); Pr = Preg(t)
        mc = v(V_MC + (b & 1)); l = [V_L + 2 * (b & 1), V_L + 2 * (b & 1) + 1]
        rel0 = GG(t, 1)
        fdeps = []
        shift = 0
        if i == 0:
            T = V_T
            m1 = Item([valu('v_max3_f32', v(T), v(S), v(S + 1), v(S + 2)),
                       valu('v_max3_f32', v(T + 1), v(S + 3), v(S + 4), v(S + 5)),
                       valu('v_max3_f32', v(T), v(T), v(S + 6), v(S + 7)),
                       valu('v_max3_f32', v(T + 1), v(T + 1), v(S + 8), v(S + 9))], rel0, rel0)
            m2 = Item([valu('v_max3_f32', v(T), v(T), v(S + 10), v(S + 11)),
                       valu('v_max3_f32', v(T + 1), v(T + 1), v(S + 12), v(S + 13)),
                       valu('v_max3_f32', v(T), v(T), v(S + 14), v(S + 15)),
                       valu('v_max_f32', v(T), v(T), v(T + 1)),
                       valu('v_max_f32', v(T + 1), v(T), v(T + 1))], rel0, rel0 + 1, deps=[(m1, 0)])
            m3 = Item([perm32(v(T), v(T + 1))], rel0, rel0 + 2, deps=[(m2, 1)])
            m4 = Item([valu('v_max_f32', v(T), v(T), v(T + 1)),
                       valu('v_mul_f32', mc, S_NC, v(T))], rel0, rel0 + 2, deps=[(m3, 0)])
            items += [m1, m2, m3, m4]
            fdeps = [(m4, 0)]
            shift = 2
        prevA = [None, None]
        Es = []
        fast = (t == 35 or t == 0)
        for el in range(16):
            if fast:
                df = GG(t, 1 + shift + el // 2 + (0 if el < 8 else 2))
                if t == 35: df = GG(t, 1 + (el * 3) // 4)
            elif shift:
                df = GG(t, 1 + shift + (el * 14) // 16)
            else:
                df = GG(t, 1 + el)
            cons = (GG(35, 8 if el < 8 else 14) if t == 35 else GG(t + 1, 0 if el < 8 else 4))
            df = min(df, cons - 3)
            F = Item(valu('v_fma_f32', v(S + el), v(S + el), S_C, mc), rel0, df, deps=fdeps)
            E = Item(valu('v_exp_f32', v(S + el), v(S + el)), rel0, df + 1, deps=[(F, 0)])
            if i == 0 and el < 2:
                A = Item(valu('v_mov_b32', v(l[el & 1]), v(S + el)), rel0, df + 3, deps=[(E, 1)])
            else:
                A = Item(valu('v_add_f32', v(l[el & 1]), v(l[el & 1]), v(S + el)), rel0, df + 3,
                         deps=[(E, 1)] + ([(prevA[el & 1], 0)] if prevA[el & 1] else []) + ([(lastA[(t - 1, el & 1)], 0)] if el < 2 and i > 0 else []))
            prevA[el & 1] = A
            Es.append(E)
            items += [F, E, A]
            if el & 1:
                Cv = Item(valu('v_cvt_pk_bf16_f32', v(Pr + el // 2), v(S + el - 1), v(S + el)), rel0, df + 2, deps=[(Es[el - 1], 1), (E, 1)])
                items.append(Cv); hard.append((Cv, cons))
        lastA[(t, 0)] = prevA[0]; lastA[(t, 1)] = prevA[1]

    for b in range(3):
        O = V_O[b & 1]; l = [V_L + 2 * (b & 1), V_L + 2 * (b & 1) + 1]
        tl = 12 * b + 11
        LT = V_LT
        if b < 2:
            r0 = GG(12 * b + 13, 8); step = 1
        else:
            r0 = GG(35, 12)
        c1 = Item([valu('v_add_f32', v(LT), v(l[0]), v(l[1])), valu('v_add_f32', v(LT + 1), v(l[0]), v(l[1]))], r0, r0 + 1,
                  deps=[(lastA[(tl, 0)], 0), (lastA[(tl, 1)], 0)])
        c2 = Item([perm32(v(LT), v(LT + 1))], r0, r0 + 2, deps=[(c1, 1)])
        chk = [valu('v_add_f32', v(LT), v(LT), v(LT + 1))]
        if o['slow']:
            chk += [raw(f'v_cmp_nge_f32 vcc, {hex(o["thresh"])}, {v(LT)}', 'valu', rd=[v(LT)], wr=['vcc'])]
        chk += [valu('v_rcp_f32', v(LT), v(LT))]
        c3 = Item(chk, r0, r0 + 3, deps=[(c2, 0)])
        br = []
        if o['slow']:
            br = [raw(f's_cbranch_vccz L_OK{b}', 'branch', rd=['vcc']),
                  raw(f's_call_b64 {S_RET}, L_SLOW{b & 1}', 'branch'),
                  label(f'L_OK{b}')]
            br[-2].w = 0; br[-1].w = 0
        if b < 2:
            c4 = Item(br, r0, r0 + 4, deps=[(c3, 0)])
        else:
            c4 = Item(br, GG(35, 17), GG(35, 17), deps=[(c3, 0)])
        items += [c1, c2, c3, c4]
        if b == 0:
            for s in range(8):
                t = 14 + s // 2
                gaps[G[(t, 5 if s % 2 == 0 else 13)]].mem.append(q_load(2, s))
        for j in range(4):
            for hh in range(2):
                R0 = O + 16 * j + 8 * hh
                k = 2 * j + hh
                if b < 2:
                    rr = r0; dl = GG(12 * b + 15, 0) + (k + 1) * (19 if b == 0 else 15)
                else:
                    rr = GG(35, 17); dl = rr + 2 * k + 2
                muls = [Item(valu('v_mul_f32', v(R0 + q), v(R0 + q), v(LT)), rr, dl - 4 if b < 2 else dl, deps=[(c4, 0), (c3, 1)]) for q in range(8)]
                cv = [Item(valu('v_cvt_pk_bf16_f32', v(R0 + q), v(R0 + 2 * q), v(R0 + 2 * q + 1)), rr, dl - 3 if b < 2 else dl,
                           deps=[(muls[2 * q], 0), (muls[2 * q + 1], 0)]) for q in range(4)]
                for q in range(1, 4): cv[q].deps.append((cv[q - 1], 0))
                sw = Item([perm32(v(R0), v(R0 + 2)), perm32(v(R0 + 1), v(R0 + 3))], rr, dl - 1 if b < 2 else dl + 1, deps=[(cv[3], 1)])
                st = Item([buf_store(v(R0, 4), v(V_OOFF), S_O, S_ST(b, j), 32 * hh, o['store_mods'])], rr, dl + 1 if b < 2 else dl + 2, deps=[(sw, 1)])
                st.mem = True
                items += muls + cv + [sw, st]

    schedule(gaps, items, log)
    for it, cons in hard: assert it.gap < cons, (it.ins, it.gap, cons)

    M = []
    over = 0
    for gi, g in enumerate(gaps):
        if g.m: M.append(g.m)
        if g.ph: M.append(placeholder())
        M += g.sc
        mem2 = [i for i in g.va if i.kind == 'vm_s']
        M += g.mem + mem2
        M += [i for i in g.va if i.kind != 'vm_s']
        M += g.post
        if g.m and g.used() > g.cap: over += g.used() - g.cap
    log.append(f'slot overflow in MFMA gaps: {over}')
    tailc = []
    if o['stamps']:
        tailc += [raw('s_memrealtime s[64:65]', 'smem'), wait(vm=0), raw('s_memrealtime s[66:67]', 'smem'), wait(lgkm=0),
                  raw('s_mov_b32 s68, s60'), raw('s_and_b32 s69, s61, 0xffff'), raw('s_mov_b32 s70, 0x100000'), raw('s_mov_b32 s71, 0x20000'),
                  raw('v_mov_b32 v48, s62', 'valu', wr=['v48']), raw('v_mov_b32 v49, s64', 'valu', wr=['v49']), raw('v_mov_b32 v50, s66', 'valu', wr=['v50']),
                  raw('v_mov_b32 v51, s72', 'valu', wr=['v51']),
                  raw('s_lshl_b32 s3, s2, 6'), raw('s_lshl_b32 s34, s22, 4'), raw('s_add_u32 s3, s3, s34'),
                  raw('v_mov_b32 v52, 0', 'valu', wr=['v52']), nop(2),
                  raw('buffer_store_dwordx4 v[48:51], v52, s[68:71], s3 offen', 'vm_s')]
    body = P + M + tailc
    body, forced = insert_waits(body, log)
    body, nops = fix_hazards(body, log)
    log.append(f'forced waits {forced}, nop states {nops}')
    text = render(body) + 'L_END:\n  s_endpgm\n'
    if o['slow']:
        for par in range(2):
            sp = slow_path(par)
            sp, _ = insert_waits(sp, None)
            sp, _ = fix_hazards(sp, None)
            text += render(sp)
    return text, log, gaps

def slow_path(par):
    L = []
    e = L.append
    O = V_O[par]; Q = A_Q[par]
    SS, SP = V_SS, V_SP
    MX, MC, LL, TT = V_SM, V_SM + 1, V_SM + 2, V_SM + 3
    e(label(f'L_SLOW{par}'))
    e(wait(lgkm=0)); e(nop(8)); e(nop(8))
    def qk(i):
        for s in range(8):
            if i < 4:
                kr = a(A_KR + 32 * i + 4 * s, 4)
            else:
                kr = a(A_SF + 4 * (s % 4), 4)
                if s % 4 == 0:
                    for s2 in range(s, s + 4):
                        e(ds_read('ds_read_b128', a(A_SF + 4 * (s2 % 4), 4), v(V_AK + s2), kslot(i) - 0x8000))
            e(mfma(v(SS, 16), kr, a(Q + 4 * s, 4), '0' if s == 0 else v(SS, 16)))
            if i >= 4 and s % 4 == 3: e(nop(8))
    for i in range(12):
        qk(i)
        for q in range(8):
            if i == 0 and q == 0:
                e(valu('v_max_f32', v(MX), v(SS), v(SS + 1)))
            else:
                e(valu('v_max3_f32', v(MX), v(MX), v(SS + 2 * q), v(SS + 2 * q + 1)))
    e(valu('v_mov_b32', v(TT), v(MX)))
    e(perm32(v(MX), v(TT)))
    e(valu('v_max_f32', v(MX), v(MX), v(TT)))
    e(valu('v_mul_f32', v(MC), S_NC, v(MX)))
    e(valu('v_mov_b32', v(LL), '0'))
    for i in range(12):
        qk(i)
        for el in range(16): e(valu('v_fma_f32', v(SS + el), v(SS + el), S_C, v(MC)))
        for el in range(16): e(valu('v_exp_f32', v(SS + el), v(SS + el)))
        for el in range(16): e(valu('v_add_f32', v(LL), v(LL), v(SS + el)))
        for q in range(8): e(valu('v_cvt_pk_bf16_f32', v(SP + q), v(SS + 2 * q), v(SS + 2 * q + 1)))
        al = V_AL if i < 8 else V_AL2
        base = (i if i < 8 else i - 8) * 0x2000
        for ks in range(2):
            for j in range(4):
                e(ds_read('ds_read_b128', a(A_SF + 4 * j, 4), v(al + j), base + ks * 4096))
            for j in range(4):
                Oj = v(O + 16 * j, 16)
                e(mfma(Oj, a(A_SF + 4 * j, 4), v(SP + 4 * ks, 4), '0' if (i == 0 and ks == 0) else Oj))
            e(nop(8))
    e(valu('v_mov_b32', v(TT), v(LL)))
    e(perm32(v(LL), v(TT)))
    e(valu('v_add_f32', v(V_LT), v(LL), v(TT)))
    e(valu('v_rcp_f32', v(V_LT), v(V_LT)))
    e(nop(8)); e(nop(8))
    e(raw(f's_setpc_b64 {S_RET}', 'branch'))
    return L

HEADER = open('standalone__gqa_softmax__near_ridge.s.ref').read().split('; Override launch')[0]

def full(opt):
    text, log, gaps = gen(opt)
    s = HEADER + '; @launch grid=(256,1,1) block=(256,1,1) lds=163840\n'
    s += f'''.amdgcn_target "amdgcn-amd-amdhsa--gfx950"
.text
.globl {KNAME}
.p2align 8
.type {KNAME},@function
{KNAME}:
'''
    s += text
    s += f'''.section .rodata,"a"
.p2align 6
.amdhsa_kernel {KNAME}
  .amdhsa_next_free_vgpr 512
  .amdhsa_next_free_sgpr 102
  .amdhsa_accum_offset 256
  .amdhsa_group_segment_fixed_size 0
  .amdhsa_kernarg_size 48
  .amdhsa_user_sgpr_count 2
  .amdhsa_user_sgpr_kernarg_segment_ptr 1
  .amdhsa_system_sgpr_workgroup_id_x 1
.end_amdhsa_kernel
'''
    return s, log, gaps

if __name__ == '__main__':
    import json
    out = sys.argv[1]
    opt = json.loads(sys.argv[2]) if len(sys.argv) > 2 else {}
    s, log, gaps = full(opt)
    open(out, 'w').write(s)
    for l in log: print(l)
    print('used per gap:')
    line = ''
    for g in gaps:
        line += f'{g.used():x}' if g.m else f'({g.used()})'
        if g.name.endswith('15)'): print(g.name, line); line = ''
    print(line)
```

```python
import sys, struct, math
sys.path.insert(0, 'gen')
from core import *

KNAME = 'standalone__gqa_softmax__near_ridge_kernel'

DEFAULT = dict(
    pre=3,
    qb_start=4,
    store_mods='',
    q_mods='', kv_mods='',
    code_prefetch=True, pf_max=0x6000,
    slow=True,
    stamps=False,
    thresh=0x47800000,
)

S_Q, S_K, S_V, S_O, S_V2 = 's[4:7]', 's[8:11]', 's[12:15]', 's[16:19]', 's[36:39]'
S_C = 's20'; S_W2K = 's21'; S_WAVE = 's22'; S_NC = 's23'
S_RET = 's[32:33]'
S_QB = ['0', 's40', 's41']
def S_ST(b, j): return f's{44 + 4 * b + j}'
V_AK = 1
V_AV = 9
V_AL = 13
V_AL2 = 17
V_KOFF0, V_KOFF1, V_VOFF, V_QOFF = 21, 22, 23, 24
V_OOFF = 25
V_L = 26
V_MC = 30
V_T = 32
V_LT = 40
V_PF = 42
V_SS = 48
V_SP = 64
V_SM = 72
V_P = 80
V_S = 96
V_O = [128, 192]
A_KR = 0; A_Q = [128, 160]; A_RING = 192; A_W = 224; A_SF = 232

LDS_V = 0x18000
def kslot(i): return i * 0x2000
def vslot(i): return LDS_V + i * 0x2000 if i < 8 else (i - 8) * 0x2000

def v(n, c=1): return rng('v', n, c)
def a(n, c=1): return rng('a', n, c)

C_SCALE = 128 ** -0.5 * math.log2(math.e)
def f32(x): return struct.unpack('<I', struct.pack('<f', x))[0]

class Gap:
    def __init__(self, m=None, cap=6, name=''):
        self.m = m; self.cap = cap; self.sc = []; self.mem = []; self.va = []; self.ph = False; self.name = name
        self.post = []
    def used(self):
        return sum(i.w for i in self.mem) + sum(i.w for i in self.va) + max(0, len(self.sc) + (1 if self.ph else 0) - 1)

class Item:
    def __init__(self, ins, rel, dl, deps=(), sep=0):
        self.ins = ins if isinstance(ins, list) else [ins]
        self.rel = rel; self.dl = dl; self.deps = list(deps); self.gap = None; self.sep = sep
        self.w = sum(i.w for i in self.ins)

def schedule(gaps, items, log):
    pend = sorted(items, key=lambda it: (it.dl, it.rel))
    for g, gap in enumerate(gaps):
        progress = True
        while progress:
            progress = False
            for it in pend:
                if it.rel > g: continue
                ok = all(d.gap is not None and d.gap + dist <= g for d, dist in it.deps)
                if not ok: continue
                room = gap.cap - gap.used()
                if it.w <= room or it.dl <= g:
                    gap.va += it.ins; it.gap = g; pend.remove(it); progress = True
                    break
                else:
                    continue
    if pend:
        raise RuntimeError(f'unscheduled: {[(it.ins, it.rel, it.dl) for it in pend[:5]]}')

def gen(opt):
    o = dict(DEFAULT); o.update(opt)
    log = []
    P = []
    nst = [0]
    def stamp():
        k = nst[0]; nst[0] += 1
        op = 's_memtime' if o['stamps'] == 'cyc' else 's_memrealtime'
        return raw(f'{op} s[{62 + 2 * k}:{63 + 2 * k}]', 'smem')
    e = P.append
    e(raw('s_cmp_ge_u32 s2, 0x100'))
    e(raw('s_cbranch_scc1 L_END', 'branch'))
    e(raw('s_load_dwordx8 s[24:31], s[0:1], 0', 'smem', wr=regs('s', 24, 8)))
    if o['stamps']:
        e(raw('s_load_dwordx2 s[60:61], s[0:1], 40', 'smem'))
        e(stamp())
    e(valu('v_lshrrev_b32', v(32), '6', 'v0'))
    e(valu('v_and_b32', v(33), '63', 'v0'))
    e(salu('s_and_b32', 's3', 's2', '7'))
    e(raw(f'v_readfirstlane_b32 {S_WAVE}, v32', 'valu', rd=['v32'], wr=[S_WAVE]))
    e(salu('s_lshr_b32', 's34', 's2', '5'))
    e(salu('s_lshl_b32', 's34', 's34', '3'))
    e(salu('s_or_b32', 's3', 's3', 's34'))
    e(salu('s_bfe_u32', 's34', 's2', '0x20003'))
    e(salu('s_lshl_b32', 's35', 's3', '2'))
    e(salu('s_or_b32', 's34', 's34', 's35'))
    e(salu('s_mul_i32', 's3', 's3', '0x18000', scc=False))
    e(salu('s_mul_i32', 's34', 's34', '0x18000', scc=False))
    e(valu('v_lshrrev_b32', v(34), '4', v(33)))
    e(valu('v_and_b32', v(35), '15', v(33)))
    e(valu('v_and_b32', v(36), '1', v(32)))
    e(valu('v_lshl_or_b32', v(36), v(36), '3', v(34)))
    e(valu('v_xor_b32', v(37), v(35), v(36)))
    e(valu('v_lshlrev_b32', v(38), '8', v(34)))
    e(valu('v_lshl_or_b32', v(V_KOFF0), v(37), '4', v(38)))
    e(valu('v_xor_b32', v(V_KOFF1), '64', v(V_KOFF0)))
    e(salu('s_lshl_b32', S_W2K, S_WAVE, '11'))
    e(salu('s_mov_b32', 's10', '0x18000', scc=False))
    e(salu('s_mov_b32', 's11', '0x20000', scc=False))
    e(salu('s_mov_b32', 'm0', S_W2K, scc=False))
    e(valu('v_and_b32', v(39), '31', v(33)))
    e(valu('v_lshl_or_b32', v(39), v(32), '5', v(39)))
    e(valu('v_lshrrev_b32', v(41), '5', v(33)))
    e(valu('v_lshlrev_b32', v(40), '4', v(41)))
    e(valu('v_lshl_or_b32', v(V_QOFF), v(39), '8', v(40)))
    e(salu('s_mov_b32', 's6', '0x18000', scc=False))
    e(salu('s_mov_b32', 's7', '0x20000', scc=False))
    e(wait(lgkm=0))
    e(salu('s_add_u32', 's8', 's26', 's3'))
    e(salu('s_addc_u32', 's9', 's27', '0'))
    e(salu('s_add_u32', 's4', 's24', 's34'))
    e(salu('s_addc_u32', 's5', 's25', '0'))

    def dma_k(i):
        return [salu('s_add_u32', 'm0', S_W2K, hex(kslot(i))),
                buf_dma(v(V_KOFF0), S_K, 'm0', 0, f'K{i}', o['kv_mods']),
                buf_dma(v(V_KOFF1), S_K, 'm0', 1024, f'K{i}', o['kv_mods'])]
    def dma_v(i):
        srd = S_V if i < 8 else S_V2
        return [salu('s_add_u32', 'm0', S_W2K, hex(vslot(i))),
                buf_dma(v(V_VOFF), srd, 'm0', 0, f'V{i}', o['kv_mods']),
                buf_dma(v(V_VOFF), srd, 'm0', 1024, f'V{i}', o['kv_mods'])]
    def q_load(b, s):
        return buf_load(a(A_Q[b & 1] + 4 * s, 4), v(V_QOFF), S_Q, S_QB[b], 32 * s, o['q_mods'])

    for x in dma_k(0)[1:]: e(x)
    for x in dma_k(1): e(x)
    for s in range(8): e(q_load(0, s))
    e(valu('v_lshlrev_b32', v(36), '2', v(34)))
    e(valu('v_xor_b32', v(37), v(35), v(36)))
    e(valu('v_lshl_or_b32', v(V_VOFF), v(37), '4', v(38)))
    e(salu('s_add_u32', 's36', 's28', 's3'))
    e(salu('s_addc_u32', 's37', 's29', '0'))
    e(salu('s_sub_u32', 's12', 's36', hex(LDS_V)))
    e(salu('s_subb_u32', 's13', 's37', '0'))
    e(salu('s_mov_b32', 's14', '0x30000', scc=False))
    e(salu('s_mov_b32', 's15', '0x20000', scc=False))
    e(salu('s_add_u32', 's36', 's36', '0x10000'))
    e(salu('s_addc_u32', 's37', 's37', '0'))
    e(salu('s_mov_b32', 's38', '0x8000', scc=False))
    e(salu('s_mov_b32', 's39', '0x20000', scc=False))
    pre = o['pre']
    kn, vn = 2, 0
    for i in range(pre):
        for x in dma_v(vn): e(x)
        vn += 1
        for x in dma_k(kn): e(x)
        kn += 1
    if o['code_prefetch']:
        e(raw('s_getpc_b64 s[56:57]', 'salu', wr=['s56', 's57']))
        e(valu('v_lshlrev_b32', v(V_PF + 1), '7', 'v0'))
        e(valu('v_min_u32', v(V_PF + 1), hex(o['pf_max']), v(V_PF + 1)))
        e(raw(f'global_load_dword {v(V_PF)}, {v(V_PF + 1)}, s[56:57]', 'vm_l', rd=[v(V_PF + 1), 's56', 's57'], wr=[v(V_PF)]))
    e(salu('s_add_u32', 's16', 's30', 's34'))
    e(salu('s_addc_u32', 's17', 's31', '0'))
    e(salu('s_mov_b32', 's18', '0x18000', scc=False))
    e(salu('s_mov_b32', 's19', '0x20000', scc=False))
    e(salu('s_mov_b32', S_C, hex(f32(C_SCALE)), scc=False))
    e(salu('s_mov_b32', S_NC, hex(f32(-C_SCALE)), scc=False))
    e(salu('s_mov_b32', 's40', '0x8000', scc=False))
    e(salu('s_mov_b32', 's41', '0x10000', scc=False))
    for j in range(4):
        e(salu('s_xor_b32', 's35', S_WAVE, str(j)))
        e(salu('s_lshl_b32', S_ST(0, j), 's35', '6'))
        e(salu('s_add_u32', S_ST(1, j), S_ST(0, j), '0x8000'))
        e(salu('s_add_u32', S_ST(2, j), S_ST(0, j), '0x10000'))
    e(valu('v_mov_b32', v(V_OOFF), v(V_QOFF)))
    e(valu('v_and_b32', v(36), '31', v(33)))
    e(valu('v_xor_b32', v(37), v(41), v(35)))
    e(valu('v_lshlrev_b32', v(37), '4', v(37)))
    e(valu('v_lshl_or_b32', v(V_AK), v(36), '8', v(37)))
    for s in range(1, 8):
        e(valu('v_xor_b32', v(V_AK + s), hex(s << 5), v(V_AK)))
    e(valu('v_and_b32', v(36), '3', v(33)))
    e(valu('v_bfe_u32', v(37), v(33), '2', '2'))
    e(valu('v_bfe_u32', v(38), v(33), '4', '1'))
    e(valu('v_lshl_or_b32', v(39), v(41), '2', v(37)))
    e(valu('v_lshlrev_b32', v(39), '8', v(39)))
    e(valu('v_lshl_or_b32', v(39), v(38), '5', v(39)))
    e(valu('v_lshl_or_b32', v(39), v(36), '3', v(39)))
    e(valu('v_xor_b32', v(37), v(37), v(32)))
    e(valu('v_lshl_or_b32', v(39), v(37), '6', v(39)))
    e(valu('v_add_u32', v(V_AV), hex(LDS_V), v(39)))
    for j in range(1, 4):
        e(valu('v_xor_b32', v(V_AV + j), hex(j << 6), v(V_AV)))
    e(valu('v_lshlrev_b32', v(36), '4', v(33)))
    e(valu('v_lshl_or_b32', v(V_AL2), v(32), '10', v(36)))
    for j in range(1, 4):
        e(valu('v_xor_b32', v(V_AL2 + j), hex(j << 10), v(V_AL2)))
    for j in range(4):
        e(valu('v_add_u32', v(V_AL + j), hex(LDS_V), v(V_AL2 + j)))
    if o['stamps']: e(stamp())
    e(barrier(tok_r=['K0', 'K1']))
    if o['stamps']: e(stamp())

    def kfrag_reg(t, s):
        i = t % 12
        return a(A_KR + 32 * i + 4 * s, 4) if i < 4 else a(A_RING + 4 * s, 4)
    def k_read(t, s):
        i = t % 12
        if i < 4:
            if t >= 12: return None
            return ds_read('ds_read_b128', kfrag_reg(t, s), v(V_AK + s), kslot(i))
        return ds_read('ds_read_b128', kfrag_reg(t, s), v(V_AK + s), kslot(i) - 0x8000)
    def vfrag_reg(t, y):
        j, ks = y & 3, y >> 2
        if t < 12 and j == 0: return A_W + 4 * ks
        return A_RING + 4 * y
    def v_reads(t, y):
        i = t % 12; j, ks = y & 3, y >> 2
        r = vfrag_reg(t, y)
        if t < 12:
            base = (i if i < 8 else i - 8) * 0x2000
            return [ds_read('ds_read_b64_tr_b16', a(r + 2 * u, 2), v(V_AV + j), base + (16 * ks + 8 * u) * 256) for u in range(2)]
        al = V_AL if i < 8 else V_AL2
        base = (i if i < 8 else i - 8) * 0x2000
        return [ds_read('ds_read_b128', a(r, 4), v(al + j), base + ks * 4096)]
    def w_write(t, ks):
        i = t
        al = V_AL if i < 8 else V_AL2
        base = (i if i < 8 else i - 8) * 0x2000
        return ds_write('ds_write_b128', v(al), a(A_W + 4 * ks, 4), base + ks * 4096, tok_w=[f'VL{i}'])
    def Sreg(t): return V_S + 16 * (t & 1)
    def Preg(t): return V_P + 8 * (t & 1)
    def qk_mfma(t, s):
        b = t // 12
        S = v(Sreg(t), 16)
        return mfma(S, kfrag_reg(t, s), a(A_Q[b & 1] + 4 * s, 4), '0' if s == 0 else S)
    def pv_mfma(t, y):
        b = t // 12; j, ks = y & 3, y >> 2
        O = v(V_O[b & 1] + 16 * j, 16)
        c = '0' if (t % 12 == 0 and ks == 0) else O
        return mfma(O, a(vfrag_reg(t, y), 4), v(Preg(t) + 4 * ks, 4), c)

    gaps = []
    G = {}
    def add_gap(key, m, cap=6):
        g = Gap(m, cap, name=str(key)); G[key] = len(gaps); gaps.append(g); return g
    g0 = add_gap(('pre', 0), None, cap=99)
    for s in range(8): g0.mem.append(k_read(0, s))
    g0.post.append(placeholder())
    for s in range(8):
        g = add_gap((-1, 8 + s), qk_mfma(0, s))
        g.mem.append(k_read(1, s))
        g.ph = (s & 1) == 1
    gaps[G[(-1, 15)]].sc += [barrier(tok_r=['V0', 'K2'])]
    gaps[G[(-1, 15)]].ph = True
    for x in range(8):
        g = add_gap((0, x), qk_mfma(1, x))
        g.mem += v_reads(0, x)
        g.ph = (x & 1) == 1
    for x in range(8, 16):
        g = add_gap((0, x), None, cap=8)
        g.ph = (x == 15)
    for t in range(1, 37):
        for x in range(16):
            if t == 36: break
            if t == 35 and x >= 8: break
            if x < 8:
                g = add_gap((t, x), pv_mfma(t - 1, x))
                if t + 1 <= 35:
                    r = k_read(t + 1, x)
                    if r: g.mem.append(r)
                if t == 35:
                    g.mem += v_reads(35, x)
            else:
                g = add_gap((t, x), qk_mfma(t + 1, x - 8))
                g.mem += v_reads(t, x - 8)
            g.ph = (x & 1) == 1
    for x in range(8, 12):
        g = add_gap((35, x), pv_mfma(35, x - 8)); g.ph = True
    for x in range(12, 14):
        g = add_gap((35, x), None, cap=8); g.ph = True
    for x in range(14, 18):
        g = add_gap((35, x), pv_mfma(35, x - 10)); g.ph = True
    NT = 40
    for x in range(18, 18 + NT):
        g = add_gap((35, x), None, cap=8)

    def GG(t, x):
        while (t, x) not in G:
            if x >= 16 and t < 35: t += 1; x -= 16
            else: raise KeyError((t, x))
        return G[(t, x)]

    for t in range(1, 14):
        toks = []
        if t <= 11: toks.append(f'V{t}')
        if t + 2 <= 11: toks.append(f'K{t + 2}')
        if t >= 2: toks.append(f'VL{t - 2}')
        g = gaps[G[(t, 7)]]
        g.sc.append(barrier(tok_r=toks)); g.ph = True
        if t - 1 <= 11:
            g.mem.append(w_write(t - 1, 0))
            gaps[G[(t, 9)]].mem.insert(0, w_write(t - 1, 1))
    for t in range(0, 12):
        if kn <= 11:
            d = dma_k(kn); kn += 1
            gaps[G[(t, 2)]].sc.append(d[0]); gaps[G[(t, 3)]].mem.append(d[1]); gaps[G[(t, 4)]].mem.append(d[2])
        if vn <= 11 and (vn < 8 or t >= vn - 8 + 1 or t >= 4):
            d = dma_v(vn); vn += 1
            gaps[G[(t, 10)]].sc.append(d[0]); gaps[G[(t, 11)]].mem.append(d[1]); gaps[G[(t, 12)]].mem.append(d[2])
    assert kn == 12 and vn == 12
    for s in range(8):
        t = o['qb_start'] + s // 2
        gaps[G[(t, 6 if s % 2 == 0 else 14)]].mem.append(q_load(1, s))

    items = []
    for s in range(8):
        items.append(Item(valu('v_add_u32', v(V_AK + s), '0x8000', v(V_AK + s)), GG(2, 8), GG(2, 15)))
    for j in range(4):
        items.append(Item(valu('v_subrev_u32', v(V_AV + j), hex(LDS_V), v(V_AV + j)), GG(8, 0), GG(8, 6)))

    lastA = {}
    hard = []
    for t in range(36):
        b, i = t // 12, t % 12
        S = Sreg(t); Pr = Preg(t)
        mc = v(V_MC + (b & 1)); l = [V_L + 2 * (b & 1), V_L + 2 * (b & 1) + 1]
        rel0 = GG(t, 1)
        fdeps = []
        shift = 0
        if i == 0:
            T = V_T
            m1 = Item([valu('v_max3_f32', v(T), v(S), v(S + 1), v(S + 2)),
                       valu('v_max3_f32', v(T + 1), v(S + 3), v(S + 4), v(S + 5)),
                       valu('v_max3_f32', v(T), v(T), v(S + 6), v(S + 7)),
                       valu('v_max3_f32', v(T + 1), v(T + 1), v(S + 8), v(S + 9))], rel0, rel0)
            m2 = Item([valu('v_max3_f32', v(T), v(T), v(S + 10), v(S + 11)),
                       valu('v_max3_f32', v(T + 1), v(T + 1), v(S + 12), v(S + 13)),
                       valu('v_max3_f32', v(T), v(T), v(S + 14), v(S + 15)),
                       valu('v_max_f32', v(T), v(T), v(T + 1)),
                       valu('v_max_f32', v(T + 1), v(T), v(T + 1))], rel0, rel0 + 1, deps=[(m1, 0)])
            m3 = Item([perm32(v(T), v(T + 1))], rel0, rel0 + 2, deps=[(m2, 1)])
            m4 = Item([valu('v_max_f32', v(T), v(T), v(T + 1)),
                       valu('v_mul_f32', mc, S_NC, v(T))], rel0, rel0 + 2, deps=[(m3, 0)])
            items += [m1, m2, m3, m4]
            fdeps = [(m4, 0)]
            shift = 2
        prevA = [None, None]
        Es = []
        fast = (t == 35 or t == 0)
        for el in range(16):
            if fast:
                df = GG(t, 1 + shift + el // 2 + (0 if el < 8 else 2))
                if t == 35: df = GG(t, 1 + (el * 3) // 4)
            elif shift:
                df = GG(t, 1 + shift + (el * 14) // 16)
            else:
                df = GG(t, 1 + el)
            cons = (GG(35, 8 if el < 8 else 14) if t == 35 else GG(t + 1, 0 if el < 8 else 4))
            df = min(df, cons - 3)
            F = Item(valu('v_fma_f32', v(S + el), v(S + el), S_C, mc), rel0, df, deps=fdeps)
            E = Item(valu('v_exp_f32', v(S + el), v(S + el)), rel0, df + 1, deps=[(F, 0)])
            if i == 0 and el < 2:
                A = Item(valu('v_mov_b32', v(l[el & 1]), v(S + el)), rel0, df + 3, deps=[(E, 1)])
            else:
                A = Item(valu('v_add_f32', v(l[el & 1]), v(l[el & 1]), v(S + el)), rel0, df + 3,
                         deps=[(E, 1)] + ([(prevA[el & 1], 0)] if prevA[el & 1] else []) + ([(lastA[(t - 1, el & 1)], 0)] if el < 2 and i > 0 else []))
            prevA[el & 1] = A
            Es.append(E)
            items += [F, E, A]
            if el & 1:
                Cv = Item(valu('v_cvt_pk_bf16_f32', v(Pr + el // 2), v(S + el - 1), v(S + el)), rel0, df + 2, deps=[(Es[el - 1], 1), (E, 1)])
                items.append(Cv); hard.append((Cv, cons))
        lastA[(t, 0)] = prevA[0]; lastA[(t, 1)] = prevA[1]

    for b in range(3):
        O = V_O[b & 1]; l = [V_L + 2 * (b & 1), V_L + 2 * (b & 1) + 1]
        tl = 12 * b + 11
        LT = V_LT
        if b < 2:
            r0 = GG(12 * b + 13, 8); step = 1
        else:
            r0 = GG(35, 12)
        c1 = Item([valu('v_add_f32', v(LT), v(l[0]), v(l[1])), valu('v_add_f32', v(LT + 1), v(l[0]), v(l[1]))], r0, r0 + 1,
                  deps=[(lastA[(tl, 0)], 0), (lastA[(tl, 1)], 0)])
        c2 = Item([perm32(v(LT), v(LT + 1))], r0, r0 + 2, deps=[(c1, 1)])
        chk = [valu('v_add_f32', v(LT), v(LT), v(LT + 1))]
        if o['slow']:
            chk += [raw(f'v_cmp_nge_f32 vcc, {hex(o["thresh"])}, {v(LT)}', 'valu', rd=[v(LT)], wr=['vcc'])]
        chk += [valu('v_rcp_f32', v(LT), v(LT))]
        c3 = Item(chk, r0, r0 + 3, deps=[(c2, 0)])
        br = []
        if o['slow']:
            br = [raw(f's_cbranch_vccz L_OK{b}', 'branch', rd=['vcc']),
                  raw(f's_call_b64 {S_RET}, L_SLOW{b & 1}', 'branch'),
                  label(f'L_OK{b}')]
            br[-2].w = 0; br[-1].w = 0
        if b < 2:
            c4 = Item(br, r0, r0 + 4, deps=[(c3, 0)])
        else:
            c4 = Item(br, GG(35, 17), GG(35, 17), deps=[(c3, 0)])
        items += [c1, c2, c3, c4]
        if b == 0:
            for s in range(8):
                t = 14 + s // 2
                gaps[G[(t, 5 if s % 2 == 0 else 13)]].mem.append(q_load(2, s))
        for j in range(4):
            for hh in range(2):
                R0 = O + 16 * j + 8 * hh
                k = 2 * j + hh
                if b < 2:
                    rr = r0; dl = GG(12 * b + 15, 0) + (k + 1) * (19 if b == 0 else 15)
                else:
                    rr = GG(35, 17); dl = rr + 2 * k + 2
                muls = [Item(valu('v_mul_f32', v(R0 + q), v(R0 + q), v(LT)), rr, dl - 4 if b < 2 else dl, deps=[(c4, 0), (c3, 1)]) for q in range(8)]
                cv = [Item(valu('v_cvt_pk_bf16_f32', v(R0 + q), v(R0 + 2 * q), v(R0 + 2 * q + 1)), rr, dl - 3 if b < 2 else dl,
                           deps=[(muls[2 * q], 0), (muls[2 * q + 1], 0)]) for q in range(4)]
                for q in range(1, 4): cv[q].deps.append((cv[q - 1], 0))
                sw = Item([perm32(v(R0), v(R0 + 2)), perm32(v(R0 + 1), v(R0 + 3))], rr, dl - 1 if b < 2 else dl + 1, deps=[(cv[3], 1)])
                st = Item([buf_store(v(R0, 4), v(V_OOFF), S_O, S_ST(b, j), 32 * hh, o['store_mods'])], rr, dl + 1 if b < 2 else dl + 2, deps=[(sw, 1)])
                st.mem = True
                items += muls + cv + [sw, st]

    if o['stamps']:
        for key in [(-1, 9), (0, 0), (1, 0), (4, 0), (8, 0), (12, 0), (18, 0), (24, 0), (30, 0), (35, 0), (35, 17)]:
            gaps[G[key]].sc.append(stamp())
    schedule(gaps, items, log)
    for it, cons in hard: assert it.gap < cons, (it.ins, it.gap, cons)

    M = []
    over = 0
    for gi, g in enumerate(gaps):
        if g.m: M.append(g.m)
        if g.ph: M.append(placeholder())
        M += g.sc
        mem2 = [i for i in g.va if i.kind == 'vm_s']
        M += g.mem + mem2
        M += [i for i in g.va if i.kind != 'vm_s']
        M += g.post
        if g.m and g.used() > g.cap: over += g.used() - g.cap
    log.append(f'slot overflow in MFMA gaps: {over}')
    tailc = []
    if o['stamps']:
        n = nst[0]
        tailc += [stamp(), wait(vm=0), stamp(), wait(lgkm=0),
                  raw('s_mov_b32 s56, s60'), raw('s_and_b32 s57, s61, 0xffff'), raw('s_mov_b32 s58, 0x100000'), raw('s_mov_b32 s59, 0x20000')]
        n = nst[0]
        assert n <= 16
        for k in range(16):
            tailc.append(raw(f'v_mov_b32 v{48 + k}, ' + (f's{62 + 2 * k}' if k < n else '0'), 'valu', wr=[f'v{48 + k}']))
        tailc += [raw('s_lshl_b32 s3, s2, 8'), raw('s_lshl_b32 s34, s22, 6'), raw('s_add_u32 s3, s3, s34'),
                  raw('v_mov_b32 v47, 0', 'valu', wr=['v47']), nop(2)]
        for k in range(4):
            tailc.append(raw(f'buffer_store_dwordx4 v[{48 + 4 * k}:{51 + 4 * k}], v47, s[56:59], s3 offen offset:{16 * k}', 'vm_s'))
    body = P + M + tailc
    body, forced = insert_waits(body, log)
    body, nops = fix_hazards(body, log)
    log.append(f'forced waits {forced}, nop states {nops}')
    text = render(body) + 'L_END:\n  s_endpgm\n'
    if o['slow']:
        for par in range(2):
            sp = slow_path(par)
            sp, _ = insert_waits(sp, None)
            sp, _ = fix_hazards(sp, None)
            text += render(sp)
    return text, log, gaps

def slow_path(par):
    L = []
    e = L.append
    O = V_O[par]; Q = A_Q[par]
    SS, SP = V_SS, V_SP
    MX, MC, LL, TT = V_SM, V_SM + 1, V_SM + 2, V_SM + 3
    e(label(f'L_SLOW{par}'))
    e(wait(lgkm=0)); e(nop(8)); e(nop(8))
    def qk(i):
        for s in range(8):
            if i < 4:
                kr = a(A_KR + 32 * i + 4 * s, 4)
            else:
                kr = a(A_SF + 4 * (s % 4), 4)
                if s % 4 == 0:
                    for s2 in range(s, s + 4):
                        e(ds_read('ds_read_b128', a(A_SF + 4 * (s2 % 4), 4), v(V_AK + s2), kslot(i) - 0x8000))
            e(mfma(v(SS, 16), kr, a(Q + 4 * s, 4), '0' if s == 0 else v(SS, 16)))
            if i >= 4 and s % 4 == 3: e(nop(8))
    for i in range(12):
        qk(i)
        for q in range(8):
            if i == 0 and q == 0:
                e(valu('v_max_f32', v(MX), v(SS), v(SS + 1)))
            else:
                e(valu('v_max3_f32', v(MX), v(MX), v(SS + 2 * q), v(SS + 2 * q + 1)))
    e(valu('v_mov_b32', v(TT), v(MX)))
    e(perm32(v(MX), v(TT)))
    e(valu('v_max_f32', v(MX), v(MX), v(TT)))
    e(valu('v_mul_f32', v(MC), S_NC, v(MX)))
    e(valu('v_mov_b32', v(LL), '0'))
    for i in range(12):
        qk(i)
        for el in range(16): e(valu('v_fma_f32', v(SS + el), v(SS + el), S_C, v(MC)))
        for el in range(16): e(valu('v_exp_f32', v(SS + el), v(SS + el)))
        for el in range(16): e(valu('v_add_f32', v(LL), v(LL), v(SS + el)))
        for q in range(8): e(valu('v_cvt_pk_bf16_f32', v(SP + q), v(SS + 2 * q), v(SS + 2 * q + 1)))
        al = V_AL if i < 8 else V_AL2
        base = (i if i < 8 else i - 8) * 0x2000
        for ks in range(2):
            for j in range(4):
                e(ds_read('ds_read_b128', a(A_SF + 4 * j, 4), v(al + j), base + ks * 4096))
            for j in range(4):
                Oj = v(O + 16 * j, 16)
                e(mfma(Oj, a(A_SF + 4 * j, 4), v(SP + 4 * ks, 4), '0' if (i == 0 and ks == 0) else Oj))
            e(nop(8))
    e(valu('v_mov_b32', v(TT), v(LL)))
    e(perm32(v(LL), v(TT)))
    e(valu('v_add_f32', v(V_LT), v(LL), v(TT)))
    e(valu('v_rcp_f32', v(V_LT), v(V_LT)))
    e(nop(8)); e(nop(8))
    e(raw(f's_setpc_b64 {S_RET}', 'branch'))
    return L

HEADER = open('standalone__gqa_softmax__near_ridge.s.ref').read().split('; Override launch')[0]

def full(opt):
    text, log, gaps = gen(opt)
    s = HEADER + '; @launch grid=(256,1,1) block=(256,1,1) lds=163840\n'
    s += f'''.amdgcn_target "amdgcn-amd-amdhsa--gfx950"
.text
.globl {KNAME}
.p2align 8
.type {KNAME},@function
{KNAME}:
'''
    s += text
    s += f'''.section .rodata,"a"
.p2align 6
.amdhsa_kernel {KNAME}
  .amdhsa_next_free_vgpr 512
  .amdhsa_next_free_sgpr 102
  .amdhsa_accum_offset 256
  .amdhsa_group_segment_fixed_size 0
  .amdhsa_kernarg_size 48
  .amdhsa_user_sgpr_count 2
  .amdhsa_user_sgpr_kernarg_segment_ptr 1
  .amdhsa_system_sgpr_workgroup_id_x 1
.end_amdhsa_kernel
'''
    return s, log, gaps

if __name__ == '__main__':
    import json
    out = sys.argv[1]
    opt = json.loads(sys.argv[2]) if len(sys.argv) > 2 else {}
    s, log, gaps = full(opt)
    open(out, 'w').write(s)
    for l in log: print(l)
    print('used per gap:')
    line = ''
    for g in gaps:
        line += f'{g.used():x}' if g.m else f'({g.used()})'
        if g.name.endswith('15)'): print(g.name, line); line = ''
    print(line)
```

```python
import sys, struct, math
sys.path.insert(0, 'gen')
from core import *

KNAME = 'standalone__gqa_softmax__near_ridge_kernel'

DEFAULT = dict(
    pre=3,
    qb_start=4,
    store_mods='',
    q_mods='', kv_mods='',
    code_prefetch=True, pf_max=0x6000,
    slow=True,
    stamps=False, wbl2=[], wbl2_sel='wave0',
    thresh=0x47800000,
    fake_coal=0, nostore=False, rot=0, l2pf=0, l2pos='bar', l2from=0,
)

S_Q, S_K, S_V, S_O, S_V2 = 's[4:7]', 's[8:11]', 's[12:15]', 's[16:19]', 's[36:39]'
S_C = 's20'; S_W2K = 's21'; S_WAVE = 's22'; S_NC = 's23'
S_RET = 's[32:33]'
S_QB = ['0', 's40', 's41']
def S_ST(b, j): return f's{44 + 4 * b + j}'
V_AK = 1
V_AV = 9
V_AL = 13
V_AL2 = 17
V_KOFF0, V_KOFF1, V_VOFF, V_QOFF = 21, 22, 23, 24
V_OOFF = 25
V_L = 26
V_MC = 30
V_T = 32
V_LT = 40
V_PF = 42
V_SS = 48
V_SP = 64
V_SM = 72
V_P = 80
V_S = 96
V_O = [128, 192]
A_KR = 0; A_Q = [128, 160]; A_RING = 192; A_W = 224; A_SF = 232

LDS_V = 0x18000
def kslot(i): return i * 0x2000
def vslot(i): return LDS_V + i * 0x2000 if i < 8 else (i - 8) * 0x2000

def v(n, c=1): return rng('v', n, c)
def a(n, c=1): return rng('a', n, c)

C_SCALE = 128 ** -0.5 * math.log2(math.e)
def f32(x): return struct.unpack('<I', struct.pack('<f', x))[0]

class Gap:
    def __init__(self, m=None, cap=6, name=''):
        self.m = m; self.cap = cap; self.sc = []; self.mem = []; self.va = []; self.ph = False; self.name = name
        self.post = []
    def used(self):
        return sum(i.w for i in self.mem) + sum(i.w for i in self.va) + max(0, len(self.sc) + (1 if self.ph else 0) - 1)

class Item:
    def __init__(self, ins, rel, dl, deps=(), sep=0):
        self.ins = ins if isinstance(ins, list) else [ins]
        self.rel = rel; self.dl = dl; self.deps = list(deps); self.gap = None; self.sep = sep
        self.w = sum(i.w for i in self.ins)

def schedule(gaps, items, log):
    pend = sorted(items, key=lambda it: (it.dl, it.rel))
    for g, gap in enumerate(gaps):
        progress = True
        while progress:
            progress = False
            for it in pend:
                if it.rel > g: continue
                ok = all(d.gap is not None and d.gap + dist <= g for d, dist in it.deps)
                if not ok: continue
                room = gap.cap - gap.used()
                if it.w <= room or it.dl <= g:
                    gap.va += it.ins; it.gap = g; pend.remove(it); progress = True
                    break
                else:
                    continue
    if pend:
        raise RuntimeError(f'unscheduled: {[(it.ins, it.rel, it.dl) for it in pend[:5]]}')

def gen(opt):
    o = dict(DEFAULT); o.update(opt)
    log = []
    P = []
    nst = [0]
    def stamp():
        k = nst[0]; nst[0] += 1
        op = 's_memtime' if o['stamps'] == 'cyc' else 's_memrealtime'
        return raw(f'{op} s[{62 + 2 * k}:{63 + 2 * k}]', 'smem')
    e = P.append
    e(raw('s_cmp_ge_u32 s2, 0x100'))
    e(raw('s_cbranch_scc1 L_END', 'branch'))
    e(raw('s_load_dwordx8 s[24:31], s[0:1], 0', 'smem', wr=regs('s', 24, 8)))
    if o['stamps']:
        e(raw('s_load_dwordx2 s[60:61], s[0:1], 40', 'smem'))
        e(stamp())
    e(valu('v_lshrrev_b32', v(32), '6', 'v0'))
    e(valu('v_and_b32', v(33), '63', 'v0'))
    e(salu('s_and_b32', 's3', 's2', '7'))
    e(raw(f'v_readfirstlane_b32 {S_WAVE}, v32', 'valu', rd=['v32'], wr=[S_WAVE]))
    e(salu('s_lshr_b32', 's34', 's2', '5'))
    e(salu('s_lshl_b32', 's34', 's34', '3'))
    e(salu('s_or_b32', 's3', 's3', 's34'))
    e(salu('s_bfe_u32', 's34', 's2', '0x20003'))
    e(salu('s_lshl_b32', 's35', 's3', '2'))
    e(salu('s_or_b32', 's34', 's34', 's35'))
    e(salu('s_mul_i32', 's3', 's3', '0x18000', scc=False))
    e(salu('s_mul_i32', 's34', 's34', '0x18000', scc=False))
    e(valu('v_lshrrev_b32', v(34), '4', v(33)))
    e(valu('v_and_b32', v(35), '15', v(33)))
    e(valu('v_and_b32', v(36), '1', v(32)))
    e(valu('v_lshl_or_b32', v(36), v(36), '3', v(34)))
    e(valu('v_xor_b32', v(37), v(35), v(36)))
    e(valu('v_lshlrev_b32', v(38), '8', v(34)))
    e(valu('v_lshl_or_b32', v(V_KOFF0), v(37), '4', v(38)))
    e(valu('v_xor_b32', v(V_KOFF1), '64', v(V_KOFF0)))
    e(salu('s_lshl_b32', S_W2K, S_WAVE, '11'))
    if o['rot']:
        e(salu('s_bfe_u32', 's98', 's2', '0x20003'))
        for u in range(4):
            if u: e(salu('s_add_u32', 's98', 's98', '1'))
            if u: e(salu('s_and_b32', 's98', 's98', '3'))
            e(salu('s_mul_i32', f's{94 + u}', 's98', '0x6000', scc=False))
            e(salu('s_add_u32', f's{94 + u}', f's{94 + u}', S_W2K))
    e(salu('s_mov_b32', 's10', '0x18000', scc=False))
    e(salu('s_mov_b32', 's11', '0x20000', scc=False))
    e(salu('s_mov_b32', 'm0', S_W2K, scc=False))
    e(valu('v_and_b32', v(39), '31', v(33)))
    e(valu('v_lshl_or_b32', v(39), v(32), '5', v(39)))
    e(valu('v_lshrrev_b32', v(41), '5', v(33)))
    e(valu('v_lshlrev_b32', v(40), '4', v(41)))
    e(valu('v_lshl_or_b32', v(V_QOFF), v(39), '8', v(40)))
    e(salu('s_mov_b32', 's6', '0x18000', scc=False))
    e(salu('s_mov_b32', 's7', '0x20000', scc=False))
    e(wait(lgkm=0))
    if o['stamps'] and o.get('fine'): e(stamp())
    e(salu('s_add_u32', 's8', 's26', 's3'))
    e(salu('s_addc_u32', 's9', 's27', '0'))
    e(salu('s_add_u32', 's4', 's24', 's34'))
    e(salu('s_addc_u32', 's5', 's25', '0'))

    def rot_so(i, tmp):
        if i % 3 == 0: return [], f's{94 + i // 3}'
        return [salu('s_add_u32', tmp, f's{94 + i // 3}', hex((i % 3) * 0x2000))], tmp
    def dma_k(i):
        if o['rot']:
            pre_, so = rot_so(i, 's98')
            return [[salu('s_add_u32', 'm0', S_W2K, hex(kslot(i)))] + pre_,
                buf_dma(v(V_KOFF0), S_K, so, 0, f'K{i}', o['kv_mods']),
                buf_dma(v(V_KOFF1), S_K, so, 1024, f'K{i}', o['kv_mods'])]
        return [[salu('s_add_u32', 'm0', S_W2K, hex(kslot(i)))],
                buf_dma(v(V_KOFF0), S_K, 'm0', 0, f'K{i}', o['kv_mods']),
                buf_dma(v(V_KOFF1), S_K, 'm0', 1024, f'K{i}', o['kv_mods'])]
    def dma_v(i):
        srd = S_V if i < 8 else S_V2
        if o['rot']:
            pre_, so = rot_so(i, 's99')
            return [[salu('s_add_u32', 'm0', S_W2K, hex(vslot(i)))] + pre_,
                buf_dma(v(V_VOFF), S_V, so, 0, f'V{i}', o['kv_mods']),
                buf_dma(v(V_VOFF), S_V, so, 1024, f'V{i}', o['kv_mods'])]
        return [[salu('s_add_u32', 'm0', S_W2K, hex(vslot(i)))],
                buf_dma(v(V_VOFF), srd, 'm0', 0, f'V{i}', o['kv_mods']),
                buf_dma(v(V_VOFF), srd, 'm0', 1024, f'V{i}', o['kv_mods'])]
    def q_load(b, s):
        return buf_load(a(A_Q[b & 1] + 4 * s, 4), v(V_QOFF), S_Q, S_QB[b], 32 * s, o['q_mods'])

    def flat(d): return d[0] + d[1:]
    for x in dma_k(0)[1:]: e(x)
    for x in flat(dma_k(1)): e(x)
    for s in range(8): e(q_load(0, s))
    if o['stamps'] and o.get('fine'): e(stamp())
    e(valu('v_lshlrev_b32', v(36), '2', v(34)))
    e(valu('v_xor_b32', v(37), v(35), v(36)))
    e(valu('v_lshl_or_b32', v(V_VOFF), v(37), '4', v(38)))
    e(salu('s_add_u32', 's36', 's28', 's3'))
    e(salu('s_addc_u32', 's37', 's29', '0'))
    e(salu('s_sub_u32', 's12', 's36', hex(LDS_V) if not o['rot'] else '0'))
    e(salu('s_subb_u32', 's13', 's37', '0'))
    e(salu('s_mov_b32', 's14', '0x30000' if not o['rot'] else '0x18000', scc=False))
    e(salu('s_mov_b32', 's15', '0x20000', scc=False))
    e(salu('s_add_u32', 's36', 's36', '0x10000'))
    e(salu('s_addc_u32', 's37', 's37', '0'))
    e(salu('s_mov_b32', 's38', '0x8000', scc=False))
    e(salu('s_mov_b32', 's39', '0x20000', scc=False))
    pre = o['pre']
    kn, vn = 2, 0
    for i in range(pre):
        for x in flat(dma_v(vn)): e(x)
        vn += 1
        for x in flat(dma_k(kn)): e(x)
        kn += 1
    if o['code_prefetch']:
        e(raw('s_getpc_b64 s[56:57]', 'salu', wr=['s56', 's57']))
        e(valu('v_lshlrev_b32', v(V_PF + 1), '7', 'v0'))
        e(valu('v_min_u32', v(V_PF + 1), hex(o['pf_max']), v(V_PF + 1)))
        e(raw(f'global_load_dword {v(V_PF)}, {v(V_PF + 1)}, s[56:57]', 'vm_l', rd=[v(V_PF + 1), 's56', 's57'], wr=[v(V_PF)]))
    e(salu('s_add_u32', 's16', 's30', 's34'))
    e(salu('s_addc_u32', 's17', 's31', '0'))
    e(salu('s_mov_b32', 's18', '0x18000', scc=False))
    e(salu('s_mov_b32', 's19', '0x20000', scc=False))
    e(salu('s_mov_b32', S_C, hex(f32(C_SCALE)), scc=False))
    e(salu('s_mov_b32', S_NC, hex(f32(-C_SCALE)), scc=False))
    e(salu('s_mov_b32', 's40', '0x8000', scc=False))
    e(salu('s_mov_b32', 's41', '0x10000', scc=False))
    for j in range(4):
        e(salu('s_xor_b32', 's35', S_WAVE, str(j)))
        if o['fake_coal'] == 1: e(salu('s_mov_b32', S_ST(0, j), hex(2048 * j)))
        elif o['fake_coal'] == 2: e(salu('s_mov_b32', S_ST(0, j), hex((j & 1) * 128 + (j >> 1) * 4096)))
        else: e(salu('s_lshl_b32', S_ST(0, j), 's35', '6'))
        e(salu('s_add_u32', S_ST(1, j), S_ST(0, j), '0x8000'))
        e(salu('s_add_u32', S_ST(2, j), S_ST(0, j), '0x10000'))
    if o['wbl2_sel'] == 'wave0': e(salu('s_mov_b32', 's42', S_WAVE, scc=False))
    else:
        e(salu('s_lshr_b32', 's42', 's2', o['wbl2_sel']))
        e(salu('s_or_b32', 's42', 's42', S_WAVE))
    if o['fake_coal'] == 1:
        e(valu('v_lshlrev_b32', v(V_OOFF), '4', v(33)))
        e(valu('v_lshl_or_b32', v(V_OOFF), v(32), '13', v(V_OOFF)))
    elif o['fake_coal'] == 2:
        e(valu('v_and_b32', v(V_OOFF), '3', v(33)))
        e(valu('v_lshlrev_b32', v(V_OOFF), '4', v(V_OOFF)))
        e(valu('v_lshrrev_b32', v(36), '2', v(33)))
        e(valu('v_lshl_or_b32', v(V_OOFF), v(36), '8', v(V_OOFF)))
        e(valu('v_lshl_or_b32', v(V_OOFF), v(32), '13', v(V_OOFF)))
    else:
        e(valu('v_mov_b32', v(V_OOFF), v(V_QOFF)))
    e(valu('v_and_b32', v(36), '31', v(33)))
    e(valu('v_xor_b32', v(37), v(41), v(35)))
    e(valu('v_lshlrev_b32', v(37), '4', v(37)))
    e(valu('v_lshl_or_b32', v(V_AK), v(36), '8', v(37)))
    for s in range(1, 8):
        e(valu('v_xor_b32', v(V_AK + s), hex(s << 5), v(V_AK)))
    e(valu('v_and_b32', v(36), '3', v(33)))
    e(valu('v_bfe_u32', v(37), v(33), '2', '2'))
    e(valu('v_bfe_u32', v(38), v(33), '4', '1'))
    e(valu('v_lshl_or_b32', v(39), v(41), '2', v(37)))
    e(valu('v_lshlrev_b32', v(39), '8', v(39)))
    e(valu('v_lshl_or_b32', v(39), v(38), '5', v(39)))
    e(valu('v_lshl_or_b32', v(39), v(36), '3', v(39)))
    e(valu('v_xor_b32', v(37), v(37), v(32)))
    e(valu('v_lshl_or_b32', v(39), v(37), '6', v(39)))
    e(valu('v_add_u32', v(V_AV), hex(LDS_V), v(39)))
    for j in range(1, 4):
        e(valu('v_xor_b32', v(V_AV + j), hex(j << 6), v(V_AV)))
    e(valu('v_lshlrev_b32', v(36), '4', v(33)))
    e(valu('v_lshl_or_b32', v(V_AL2), v(32), '10', v(36)))
    for j in range(1, 4):
        e(valu('v_xor_b32', v(V_AL2 + j), hex(j << 10), v(V_AL2)))
    for j in range(4):
        e(valu('v_add_u32', v(V_AL + j), hex(LDS_V), v(V_AL2 + j)))
    def l2pf_code():
        c = []
        st = o['l2pf']
        lo = o['l2from'] * 0x2000
        share = (0x18000 - lo) // 4
        n = (share + st * 256 - 1) // (st * 256)
        c.append(salu('s_bfe_u32', 's98', 's2', '0x20003'))
        c.append(salu('s_mul_i32', 's98', 's98', hex(share), scc=False))
        c.append(salu('s_add_u32', 's98', 's98', hex(lo)))
        c.append(salu('s_add_u32', 's99', 's98', hex(LDS_V)))
        for k in range(n):
            c.append(valu('v_mul_u32_u24', v(44 + k), hex(st), 'v0'))
            if k: c.append(valu('v_add_u32', v(44 + k), hex(k * st * 256), v(44 + k)))
            c.append(valu('v_min_u32', v(44 + k), hex(share - st), v(44 + k)))
        l = []
        for k in range(n):
            l.append(raw(f'buffer_load_dword v{46 + k}, v{44 + k}, {S_K}, s98 offen', 'vm_l', rd=[v(44 + k), 's98'] + R(S_K), wr=[v(46 + k)]))
            l.append(raw(f'buffer_load_dword v{48 + k}, v{44 + k}, {S_V}, s99 offen', 'vm_l', rd=[v(44 + k), 's99'] + R(S_V), wr=[v(48 + k)]))
        return c, l
    if o['l2pf']:
        c, l2l = l2pf_code()
        for x in c: e(x)
        if o['l2pos'] == 'pro':
            for x in l2l: e(x)
    if o['stamps']: e(stamp())
    e(barrier(tok_r=['K0', 'K1']))
    if o['stamps']: e(stamp())
    if o['l2pf'] and o['l2pos'] == 'bar':
        for x in l2l: e(x)

    def kfrag_reg(t, s):
        i = t % 12
        return a(A_KR + 32 * i + 4 * s, 4) if i < 4 else a(A_RING + 4 * s, 4)
    def k_read(t, s):
        i = t % 12
        if i < 4:
            if t >= 12: return None
            return ds_read('ds_read_b128', kfrag_reg(t, s), v(V_AK + s), kslot(i))
        return ds_read('ds_read_b128', kfrag_reg(t, s), v(V_AK + s), kslot(i) - 0x8000)
    def vfrag_reg(t, y):
        j, ks = y & 3, y >> 2
        if t < 12 and j == 0: return A_W + 4 * ks
        return A_RING + 4 * y
    def v_reads(t, y):
        i = t % 12; j, ks = y & 3, y >> 2
        r = vfrag_reg(t, y)
        if t < 12:
            base = (i if i < 8 else i - 8) * 0x2000
            return [ds_read('ds_read_b64_tr_b16', a(r + 2 * u, 2), v(V_AV + j), base + (16 * ks + 8 * u) * 256) for u in range(2)]
        al = V_AL if i < 8 else V_AL2
        base = (i if i < 8 else i - 8) * 0x2000
        return [ds_read('ds_read_b128', a(r, 4), v(al + j), base + ks * 4096)]
    def w_write(t, ks):
        i = t
        al = V_AL if i < 8 else V_AL2
        base = (i if i < 8 else i - 8) * 0x2000
        return ds_write('ds_write_b128', v(al), a(A_W + 4 * ks, 4), base + ks * 4096, tok_w=[f'VL{i}'])
    def Sreg(t): return V_S + 16 * (t & 1)
    def Preg(t): return V_P + 8 * (t & 1)
    def qk_mfma(t, s):
        b = t // 12
        S = v(Sreg(t), 16)
        return mfma(S, kfrag_reg(t, s), a(A_Q[b & 1] + 4 * s, 4), '0' if s == 0 else S)
    def pv_mfma(t, y):
        b = t // 12; j, ks = y & 3, y >> 2
        O = v(V_O[b & 1] + 16 * j, 16)
        c = '0' if (t % 12 == 0 and ks == 0) else O
        return mfma(O, a(vfrag_reg(t, y), 4), v(Preg(t) + 4 * ks, 4), c)

    gaps = []
    G = {}
    def add_gap(key, m, cap=6):
        g = Gap(m, cap, name=str(key)); G[key] = len(gaps); gaps.append(g); return g
    g0 = add_gap(('pre', 0), None, cap=99)
    for s in range(8): g0.mem.append(k_read(0, s))
    g0.post.append(placeholder())
    for s in range(8):
        g = add_gap((-1, 8 + s), qk_mfma(0, s))
        g.mem.append(k_read(1, s))
        g.ph = (s & 1) == 1
    gaps[G[(-1, 15)]].sc += [barrier(tok_r=['V0', 'K2'])]
    gaps[G[(-1, 15)]].ph = True
    for x in range(8):
        g = add_gap((0, x), qk_mfma(1, x))
        g.mem += v_reads(0, x)
        g.ph = (x & 1) == 1
    for x in range(8, 16):
        g = add_gap((0, x), None, cap=8)
        g.ph = (x == 15)
    for t in range(1, 37):
        for x in range(16):
            if t == 36: break
            if t == 35 and x >= 8: break
            if x < 8:
                g = add_gap((t, x), pv_mfma(t - 1, x))
                if t + 1 <= 35:
                    r = k_read(t + 1, x)
                    if r: g.mem.append(r)
                if t == 35:
                    g.mem += v_reads(35, x)
            else:
                g = add_gap((t, x), qk_mfma(t + 1, x - 8))
                g.mem += v_reads(t, x - 8)
            g.ph = (x & 1) == 1
    for x in range(8, 12):
        g = add_gap((35, x), pv_mfma(35, x - 8)); g.ph = True
    for x in range(12, 14):
        g = add_gap((35, x), None, cap=8); g.ph = True
    for x in range(14, 18):
        g = add_gap((35, x), pv_mfma(35, x - 10)); g.ph = True
    NT = 40
    for x in range(18, 18 + NT):
        g = add_gap((35, x), None, cap=8)

    def GG(t, x):
        while (t, x) not in G:
            if x >= 16 and t < 35: t += 1; x -= 16
            else: raise KeyError((t, x))
        return G[(t, x)]

    for t in range(1, 14):
        toks = []
        if t <= 11: toks.append(f'V{t}')
        if t + 2 <= 11: toks.append(f'K{t + 2}')
        if t >= 2: toks.append(f'VL{t - 2}')
        g = gaps[G[(t, 7)]]
        g.sc.append(barrier(tok_r=toks)); g.ph = True
        if t - 1 <= 11:
            g.mem.append(w_write(t - 1, 0))
            gaps[G[(t, 9)]].mem.insert(0, w_write(t - 1, 1))
    for t in range(0, 12):
        if kn <= 11:
            d = dma_k(kn); kn += 1
            gaps[G[(t, 2)]].sc += d[0]; gaps[G[(t, 3)]].mem.append(d[1]); gaps[G[(t, 4)]].mem.append(d[2])
        if vn <= 11 and (vn < 8 or t >= vn - 8 + 1 or t >= 4):
            d = dma_v(vn); vn += 1
            gaps[G[(t, 10)]].sc += d[0]; gaps[G[(t, 11)]].mem.append(d[1]); gaps[G[(t, 12)]].mem.append(d[2])
    assert kn == 12 and vn == 12
    for s in range(8):
        t = o['qb_start'] + s // 2
        gaps[G[(t, 6 if s % 2 == 0 else 14)]].mem.append(q_load(1, s))

    items = []
    for s in range(8):
        items.append(Item(valu('v_add_u32', v(V_AK + s), '0x8000', v(V_AK + s)), GG(2, 8), GG(2, 15)))
    for j in range(4):
        items.append(Item(valu('v_subrev_u32', v(V_AV + j), hex(LDS_V), v(V_AV + j)), GG(8, 0), GG(8, 6)))

    lastA = {}
    hard = []
    for t in range(36):
        b, i = t // 12, t % 12
        S = Sreg(t); Pr = Preg(t)
        mc = v(V_MC + (b & 1)); l = [V_L + 2 * (b & 1), V_L + 2 * (b & 1) + 1]
        rel0 = GG(t, 1)
        fdeps = []
        shift = 0
        if i == 0:
            T = V_T
            m1 = Item([valu('v_max3_f32', v(T), v(S), v(S + 1), v(S + 2)),
                       valu('v_max3_f32', v(T + 1), v(S + 3), v(S + 4), v(S + 5)),
                       valu('v_max3_f32', v(T), v(T), v(S + 6), v(S + 7)),
                       valu('v_max3_f32', v(T + 1), v(T + 1), v(S + 8), v(S + 9))], rel0, rel0)
            m2 = Item([valu('v_max3_f32', v(T), v(T), v(S + 10), v(S + 11)),
                       valu('v_max3_f32', v(T + 1), v(T + 1), v(S + 12), v(S + 13)),
                       valu('v_max3_f32', v(T), v(T), v(S + 14), v(S + 15)),
                       valu('v_max_f32', v(T), v(T), v(T + 1)),
                       valu('v_max_f32', v(T + 1), v(T), v(T + 1))], rel0, rel0 + 1, deps=[(m1, 0)])
            m3 = Item([perm32(v(T), v(T + 1))], rel0, rel0 + 2, deps=[(m2, 1)])
            m4 = Item([valu('v_max_f32', v(T), v(T), v(T + 1)),
                       valu('v_mul_f32', mc, S_NC, v(T))], rel0, rel0 + 2, deps=[(m3, 0)])
            items += [m1, m2, m3, m4]
            fdeps = [(m4, 0)]
            shift = 2
        prevA = [None, None]
        Es = []
        fast = (t == 35 or t == 0)
        for el in range(16):
            if fast:
                df = GG(t, 1 + shift + el // 2 + (0 if el < 8 else 2))
                if t == 35: df = GG(t, 1 + (el * 3) // 4)
            elif shift:
                df = GG(t, 1 + shift + (el * 14) // 16)
            else:
                df = GG(t, 1 + el)
            cons = (GG(35, 8 if el < 8 else 14) if t == 35 else GG(t + 1, 0 if el < 8 else 4))
            df = min(df, cons - 3)
            F = Item(valu('v_fma_f32', v(S + el), v(S + el), S_C, mc), rel0, df, deps=fdeps)
            E = Item(valu('v_exp_f32', v(S + el), v(S + el)), rel0, df + 1, deps=[(F, 0)])
            if i == 0 and el < 2:
                A = Item(valu('v_mov_b32', v(l[el & 1]), v(S + el)), rel0, df + 3, deps=[(E, 1)])
            else:
                A = Item(valu('v_add_f32', v(l[el & 1]), v(l[el & 1]), v(S + el)), rel0, df + 3,
                         deps=[(E, 1)] + ([(prevA[el & 1], 0)] if prevA[el & 1] else []) + ([(lastA[(t - 1, el & 1)], 0)] if el < 2 and i > 0 else []))
            prevA[el & 1] = A
            Es.append(E)
            items += [F, E, A]
            if el & 1:
                Cv = Item(valu('v_cvt_pk_bf16_f32', v(Pr + el // 2), v(S + el - 1), v(S + el)), rel0, df + 2, deps=[(Es[el - 1], 1), (E, 1)])
                items.append(Cv); hard.append((Cv, cons))
        lastA[(t, 0)] = prevA[0]; lastA[(t, 1)] = prevA[1]

    for b in range(3):
        O = V_O[b & 1]; l = [V_L + 2 * (b & 1), V_L + 2 * (b & 1) + 1]
        tl = 12 * b + 11
        LT = V_LT
        if b < 2:
            r0 = GG(12 * b + 13, 8); step = 1
        else:
            r0 = GG(35, 12)
        c1 = Item([valu('v_add_f32', v(LT), v(l[0]), v(l[1])), valu('v_add_f32', v(LT + 1), v(l[0]), v(l[1]))], r0, r0 + 1,
                  deps=[(lastA[(tl, 0)], 0), (lastA[(tl, 1)], 0)])
        c2 = Item([perm32(v(LT), v(LT + 1))], r0, r0 + 2, deps=[(c1, 1)])
        chk = [valu('v_add_f32', v(LT), v(LT), v(LT + 1))]
        if o['slow']:
            chk += [raw(f'v_cmp_nge_f32 vcc, {hex(o["thresh"])}, {v(LT)}', 'valu', rd=[v(LT)], wr=['vcc'])]
        chk += [valu('v_rcp_f32', v(LT), v(LT))]
        c3 = Item(chk, r0, r0 + 3, deps=[(c2, 0)])
        br = []
        if o['slow']:
            br = [raw(f's_cbranch_vccz L_OK{b}', 'branch', rd=['vcc']),
                  raw(f's_call_b64 {S_RET}, L_SLOW{b & 1}', 'branch'),
                  label(f'L_OK{b}')]
            br[-2].w = 0; br[-1].w = 0
        if b < 2:
            c4 = Item(br, r0, r0 + 4, deps=[(c3, 0)])
        else:
            c4 = Item(br, GG(35, 17), GG(35, 17), deps=[(c3, 0)])
        items += [c1, c2, c3, c4]
        if b == 0:
            for s in range(8):
                t = 14 + s // 2
                gaps[G[(t, 5 if s % 2 == 0 else 13)]].mem.append(q_load(2, s))
        for j in range(4):
            for hh in range(2):
                R0 = O + 16 * j + 8 * hh
                k = 2 * j + hh
                if b < 2:
                    rr = r0; dl = GG(12 * b + 15, 0) + (k + 1) * (19 if b == 0 else 15)
                else:
                    rr = GG(35, 17); dl = rr + 2 * k + 2
                muls = [Item(valu('v_mul_f32', v(R0 + q), v(R0 + q), v(LT)), rr, dl - 4 if b < 2 else dl, deps=[(c4, 0), (c3, 1)]) for q in range(8)]
                cv = [Item(valu('v_cvt_pk_bf16_f32', v(R0 + q), v(R0 + 2 * q), v(R0 + 2 * q + 1)), rr, dl - 3 if b < 2 else dl,
                           deps=[(muls[2 * q], 0), (muls[2 * q + 1], 0)]) for q in range(4)]
                for q in range(1, 4): cv[q].deps.append((cv[q - 1], 0))
                sw = Item([perm32(v(R0), v(R0 + 2)), perm32(v(R0 + 1), v(R0 + 3))], rr, dl - 1 if b < 2 else dl + 1, deps=[(cv[3], 1)])
                st = Item([buf_store(v(R0, 4), v(V_OOFF), S_O, S_ST(b, j), [32, 1024, 64][o['fake_coal']] * hh, o['store_mods'] if not isinstance(o['store_mods'], list) else o['store_mods'][b])], rr, dl + 1 if b < 2 else dl + 2, deps=[(sw, 1)])
                st.mem = True
                items += muls + cv + [sw, st]

    for n, key in enumerate(o['wbl2']):
        g = gaps[G[tuple(key)]]
        g.sc += [raw('s_cmp_eq_u32 s42, 0'), raw(f's_cbranch_scc0 L_WB{n}', 'branch'), raw('buffer_wbl2 sc1', 'vm_s'), label(f'L_WB{n}')]
    if o['stamps']:
        for key in ([(-1, 9), (0, 0), (1, 0), (4, 0), (8, 0), (12, 0), (18, 0), (24, 0), (30, 0), (35, 0), (35, 17)] if not o.get('fine') else
                    [(-1, 8), (-1, 15), (0, 0), (1, 0), (2, 0), (4, 0), (8, 0), (12, 0), (24, 0)]):
            gaps[G[key]].sc.append(stamp())
    schedule(gaps, items, log)
    for it, cons in hard: assert it.gap < cons, (it.ins, it.gap, cons)

    M = []
    over = 0
    for gi, g in enumerate(gaps):
        if g.m: M.append(g.m)
        if g.ph: M.append(placeholder())
        M += g.sc
        mem2 = [i for i in g.va if i.kind == 'vm_s']
        M += g.mem + mem2
        M += [i for i in g.va if i.kind != 'vm_s']
        M += g.post
        if g.m and g.used() > g.cap: over += g.used() - g.cap
    log.append(f'slot overflow in MFMA gaps: {over}')
    tailc = []
    if o['stamps']:
        n = nst[0]
        tailc += [stamp(), wait(vm=0), stamp(), wait(lgkm=0),
                  raw('s_mov_b32 s56, s60'), raw('s_and_b32 s57, s61, 0xffff'), raw('s_mov_b32 s58, 0x100000'), raw('s_mov_b32 s59, 0x20000')]
        n = nst[0]
        assert n <= 16
        for k in range(16):
            tailc.append(raw(f'v_mov_b32 v{48 + k}, ' + (f's{62 + 2 * k}' if k < n else '0'), 'valu', wr=[f'v{48 + k}']))
        tailc += [raw('s_lshl_b32 s3, s2, 8'), raw('s_lshl_b32 s34, s22, 6'), raw('s_add_u32 s3, s3, s34'),
                  raw('v_mov_b32 v47, 0', 'valu', wr=['v47']), nop(2)]
        for k in range(4):
            tailc.append(raw(f'buffer_store_dwordx4 v[{48 + 4 * k}:{51 + 4 * k}], v47, s[56:59], s3 offen offset:{16 * k}', 'vm_s'))
    body = P + M + tailc
    body, forced = insert_waits(body, log)
    body, nops = fix_hazards(body, log)
    log.append(f'forced waits {forced}, nop states {nops}')
    text = render(body) + 'L_END:\n  s_endpgm\n'
    if o['slow']:
        for par in range(2):
            sp = slow_path(par)
            sp, _ = insert_waits(sp, None)
            sp, _ = fix_hazards(sp, None)
            text += render(sp)
    return text, log, gaps

def slow_path(par):
    L = []
    e = L.append
    O = V_O[par]; Q = A_Q[par]
    SS, SP = V_SS, V_SP
    MX, MC, LL, TT = V_SM, V_SM + 1, V_SM + 2, V_SM + 3
    e(label(f'L_SLOW{par}'))
    e(wait(lgkm=0)); e(nop(8)); e(nop(8))
    def qk(i):
        for s in range(8):
            if i < 4:
                kr = a(A_KR + 32 * i + 4 * s, 4)
            else:
                kr = a(A_SF + 4 * (s % 4), 4)
                if s % 4 == 0:
                    for s2 in range(s, s + 4):
                        e(ds_read('ds_read_b128', a(A_SF + 4 * (s2 % 4), 4), v(V_AK + s2), kslot(i) - 0x8000))
            e(mfma(v(SS, 16), kr, a(Q + 4 * s, 4), '0' if s == 0 else v(SS, 16)))
            if i >= 4 and s % 4 == 3: e(nop(8))
    for i in range(12):
        qk(i)
        for q in range(8):
            if i == 0 and q == 0:
                e(valu('v_max_f32', v(MX), v(SS), v(SS + 1)))
            else:
                e(valu('v_max3_f32', v(MX), v(MX), v(SS + 2 * q), v(SS + 2 * q + 1)))
    e(valu('v_mov_b32', v(TT), v(MX)))
    e(perm32(v(MX), v(TT)))
    e(valu('v_max_f32', v(MX), v(MX), v(TT)))
    e(valu('v_mul_f32', v(MC), S_NC, v(MX)))
    e(valu('v_mov_b32', v(LL), '0'))
    for i in range(12):
        qk(i)
        for el in range(16): e(valu('v_fma_f32', v(SS + el), v(SS + el), S_C, v(MC)))
        for el in range(16): e(valu('v_exp_f32', v(SS + el), v(SS + el)))
        for el in range(16): e(valu('v_add_f32', v(LL), v(LL), v(SS + el)))
        for q in range(8): e(valu('v_cvt_pk_bf16_f32', v(SP + q), v(SS + 2 * q), v(SS + 2 * q + 1)))
        al = V_AL if i < 8 else V_AL2
        base = (i if i < 8 else i - 8) * 0x2000
        for ks in range(2):
            for j in range(4):
                e(ds_read('ds_read_b128', a(A_SF + 4 * j, 4), v(al + j), base + ks * 4096))
            for j in range(4):
                Oj = v(O + 16 * j, 16)
                e(mfma(Oj, a(A_SF + 4 * j, 4), v(SP + 4 * ks, 4), '0' if (i == 0 and ks == 0) else Oj))
            e(nop(8))
    e(valu('v_mov_b32', v(TT), v(LL)))
    e(perm32(v(LL), v(TT)))
    e(valu('v_add_f32', v(V_LT), v(LL), v(TT)))
    e(valu('v_rcp_f32', v(V_LT), v(V_LT)))
    e(nop(8)); e(nop(8))
    e(raw(f's_setpc_b64 {S_RET}', 'branch'))
    return L

HEADER = open('standalone__gqa_softmax__near_ridge.s.ref').read().split('; Override launch')[0]

def full(opt):
    text, log, gaps = gen(opt)
    s = HEADER + '; @launch grid=(256,1,1) block=(256,1,1) lds=163840\n'
    s += f'''.amdgcn_target "amdgcn-amd-amdhsa--gfx950"
.text
.globl {KNAME}
.p2align 8
.type {KNAME},@function
{KNAME}:
'''
    s += text
    s += f'''.section .rodata,"a"
.p2align 6
.amdhsa_kernel {KNAME}
  .amdhsa_next_free_vgpr 512
  .amdhsa_next_free_sgpr 102
  .amdhsa_accum_offset 256
  .amdhsa_group_segment_fixed_size 0
  .amdhsa_kernarg_size 48
  .amdhsa_user_sgpr_count 2
  .amdhsa_user_sgpr_kernarg_segment_ptr 1
  .amdhsa_system_sgpr_workgroup_id_x 1
.end_amdhsa_kernel
'''
    return s, log, gaps

if __name__ == '__main__':
    import json
    out = sys.argv[1]
    opt = json.loads(sys.argv[2]) if len(sys.argv) > 2 else {}
    s, log, gaps = full(opt)
    open(out, 'w').write(s)
    for l in log: print(l)
    print('used per gap:')
    line = ''
    for g in gaps:
        line += f'{g.used():x}' if g.m else f'({g.used()})'
        if g.name.endswith('15)'): print(g.name, line); line = ''
    print(line)
```

```python
import sys, struct, math
sys.path.insert(0, 'gen')
from core import *

KNAME = 'standalone__gqa_softmax__near_ridge_kernel'

DEFAULT = dict(
    pre=3,
    qb_start=4,
    store_mods='',
    q_mods='', kv_mods='',
    code_prefetch=True, pf_max=0x6000,
    slow=True,
    stamps=False, wbl2=[], wbl2_sel='wave0',
    thresh=0x47800000,
    fake_coal=0, nostore=False, rot=0, l2pf=0, l2pos='bar', l2from=0,
)

S_Q, S_K, S_V, S_O, S_V2 = 's[4:7]', 's[8:11]', 's[12:15]', 's[16:19]', 's[36:39]'
S_C = 's20'; S_W2K = 's21'; S_WAVE = 's22'; S_NC = 's23'
S_RET = 's[32:33]'
S_QB = ['0', 's40', 's41']
def S_ST(b, j): return f's{44 + 4 * b + j}'
V_AK = 1
V_AV = 9
V_AL = 13
V_AL2 = 17
V_KOFF0, V_KOFF1, V_VOFF, V_QOFF = 21, 22, 23, 24
V_OOFF = 25
V_L = 26
V_MC = 30
V_T = 32
V_LT = 40
V_PF = 42
V_SS = 48
V_SP = 64
V_SM = 72
V_P = 80
V_S = 96
V_O = [128, 192]
A_KR = 0; A_Q = [128, 160]; A_RING = 192; A_W = 224; A_SF = 232

LDS_V = 0x18000
def kslot(i): return i * 0x2000
def vslot(i): return LDS_V + i * 0x2000 if i < 8 else (i - 8) * 0x2000

def v(n, c=1): return rng('v', n, c)
def a(n, c=1): return rng('a', n, c)

C_SCALE = 128 ** -0.5 * math.log2(math.e)
def f32(x): return struct.unpack('<I', struct.pack('<f', x))[0]

class Gap:
    def __init__(self, m=None, cap=6, name=''):
        self.m = m; self.cap = cap; self.sc = []; self.mem = []; self.va = []; self.ph = False; self.name = name
        self.post = []
    def used(self):
        return sum(i.w for i in self.mem) + sum(i.w for i in self.va) + max(0, len(self.sc) + (1 if self.ph else 0) - 1)

class Item:
    def __init__(self, ins, rel, dl, deps=(), sep=0):
        self.ins = ins if isinstance(ins, list) else [ins]
        self.rel = rel; self.dl = dl; self.deps = list(deps); self.gap = None; self.sep = sep
        self.w = sum(i.w for i in self.ins)

def schedule(gaps, items, log):
    pend = sorted(items, key=lambda it: (it.dl, it.rel))
    for g, gap in enumerate(gaps):
        progress = True
        while progress:
            progress = False
            for it in pend:
                if it.rel > g: continue
                ok = all(d.gap is not None and d.gap + dist <= g for d, dist in it.deps)
                if not ok: continue
                room = gap.cap - gap.used()
                if it.w <= room or it.dl <= g:
                    gap.va += it.ins; it.gap = g; pend.remove(it); progress = True
                    break
                else:
                    continue
    if pend:
        raise RuntimeError(f'unscheduled: {[(it.ins, it.rel, it.dl) for it in pend[:5]]}')

def gen(opt):
    o = dict(DEFAULT); o.update(opt)
    log = []
    P = []
    nst = [0]
    def stamp():
        k = nst[0]; nst[0] += 1
        op = 's_memtime' if o['stamps'] == 'cyc' else 's_memrealtime'
        return raw(f'{op} s[{62 + 2 * k}:{63 + 2 * k}]', 'smem')
    e = P.append
    e(raw('s_cmp_ge_u32 s2, 0x100'))
    e(raw('s_cbranch_scc1 L_END', 'branch'))
    e(raw('s_load_dwordx8 s[24:31], s[0:1], 0', 'smem', wr=regs('s', 24, 8)))
    if o['stamps']:
        e(raw('s_load_dwordx2 s[60:61], s[0:1], %d' % (32 if o.get('dbg') is not None else 40), 'smem'))
        e(stamp())
    e(valu('v_lshrrev_b32', v(32), '6', 'v0'))
    e(valu('v_and_b32', v(33), '63', 'v0'))
    e(salu('s_and_b32', 's3', 's2', '7'))
    e(raw(f'v_readfirstlane_b32 {S_WAVE}, v32', 'valu', rd=['v32'], wr=[S_WAVE]))
    e(salu('s_lshr_b32', 's34', 's2', '5'))
    e(salu('s_lshl_b32', 's34', 's34', '3'))
    e(salu('s_or_b32', 's3', 's3', 's34'))
    e(salu('s_bfe_u32', 's34', 's2', '0x20003'))
    e(salu('s_lshl_b32', 's35', 's3', '2'))
    e(salu('s_or_b32', 's34', 's34', 's35'))
    e(salu('s_mul_i32', 's3', 's3', '0x18000', scc=False))
    e(salu('s_mul_i32', 's34', 's34', '0x18000', scc=False))
    e(valu('v_lshrrev_b32', v(34), '4', v(33)))
    e(valu('v_and_b32', v(35), '15', v(33)))
    e(valu('v_and_b32', v(36), '1', v(32)))
    e(valu('v_lshl_or_b32', v(36), v(36), '3', v(34)))
    e(valu('v_xor_b32', v(37), v(35), v(36)))
    e(valu('v_lshlrev_b32', v(38), '8', v(34)))
    e(valu('v_lshl_or_b32', v(V_KOFF0), v(37), '4', v(38)))
    e(valu('v_xor_b32', v(V_KOFF1), '64', v(V_KOFF0)))
    e(salu('s_lshl_b32', S_W2K, S_WAVE, '11'))
    if o['rot']:
        e(salu('s_bfe_u32', 's98', 's2', '0x20003'))
        for u in range(4):
            if u: e(salu('s_add_u32', 's98', 's98', '1'))
            if u: e(salu('s_and_b32', 's98', 's98', '3'))
            e(salu('s_mul_i32', f's{94 + u}', 's98', '0x6000', scc=False))
            e(salu('s_add_u32', f's{94 + u}', f's{94 + u}', S_W2K))
    e(salu('s_mov_b32', 's10', '0x18000', scc=False))
    e(salu('s_mov_b32', 's11', '0x20000', scc=False))
    e(salu('s_mov_b32', 'm0', S_W2K, scc=False))
    e(valu('v_and_b32', v(39), '31', v(33)))
    e(valu('v_lshl_or_b32', v(39), v(32), '5', v(39)))
    e(valu('v_lshrrev_b32', v(41), '5', v(33)))
    e(valu('v_lshlrev_b32', v(40), '4', v(41)))
    e(valu('v_lshl_or_b32', v(V_QOFF), v(39), '8', v(40)))
    e(salu('s_mov_b32', 's6', '0x18000', scc=False))
    e(salu('s_mov_b32', 's7', '0x20000', scc=False))
    e(wait(lgkm=0))
    if o['stamps'] and o.get('fine'): e(stamp())
    e(salu('s_add_u32', 's8', 's26', 's3'))
    e(salu('s_addc_u32', 's9', 's27', '0'))
    e(salu('s_add_u32', 's4', 's24', 's34'))
    e(salu('s_addc_u32', 's5', 's25', '0'))

    def rot_so(i, tmp):
        if i % 3 == 0: return [], f's{94 + i // 3}'
        return [salu('s_add_u32', tmp, f's{94 + i // 3}', hex((i % 3) * 0x2000))], tmp
    def dma_k(i):
        if o['rot']:
            pre_, so = rot_so(i, 's98')
            return [[salu('s_add_u32', 'm0', S_W2K, hex(kslot(i)))] + pre_,
                buf_dma(v(V_KOFF0), S_K, so, 0, f'K{i}', o['kv_mods']),
                buf_dma(v(V_KOFF1), S_K, so, 1024, f'K{i}', o['kv_mods'])]
        return [[salu('s_add_u32', 'm0', S_W2K, hex(kslot(i)))],
                buf_dma(v(V_KOFF0), S_K, 'm0', 0, f'K{i}', o['kv_mods']),
                buf_dma(v(V_KOFF1), S_K, 'm0', 1024, f'K{i}', o['kv_mods'])]
    def dma_v(i):
        srd = S_V if i < 8 else S_V2
        if o['rot']:
            pre_, so = rot_so(i, 's99')
            return [[salu('s_add_u32', 'm0', S_W2K, hex(vslot(i)))] + pre_,
                buf_dma(v(V_VOFF), S_V, so, 0, f'V{i}', o['kv_mods']),
                buf_dma(v(V_VOFF), S_V, so, 1024, f'V{i}', o['kv_mods'])]
        return [[salu('s_add_u32', 'm0', S_W2K, hex(vslot(i)))],
                buf_dma(v(V_VOFF), srd, 'm0', 0, f'V{i}', o['kv_mods']),
                buf_dma(v(V_VOFF), srd, 'm0', 1024, f'V{i}', o['kv_mods'])]
    def q_load(b, s):
        return buf_load(a(A_Q[b & 1] + 4 * s, 4), v(V_QOFF), S_Q, S_QB[b], 32 * s, o['q_mods'])

    def flat(d): return d[0] + d[1:]
    for x in dma_k(0)[1:]: e(x)
    for x in flat(dma_k(1)): e(x)
    for s in range(8): e(q_load(0, s))
    if o['stamps'] and o.get('fine'): e(stamp())
    e(valu('v_lshlrev_b32', v(36), '2', v(34)))
    e(valu('v_xor_b32', v(37), v(35), v(36)))
    e(valu('v_lshl_or_b32', v(V_VOFF), v(37), '4', v(38)))
    e(salu('s_add_u32', 's36', 's28', 's3'))
    e(salu('s_addc_u32', 's37', 's29', '0'))
    e(salu('s_sub_u32', 's12', 's36', hex(LDS_V) if not o['rot'] else '0'))
    e(salu('s_subb_u32', 's13', 's37', '0'))
    e(salu('s_mov_b32', 's14', '0x30000' if not o['rot'] else '0x18000', scc=False))
    e(salu('s_mov_b32', 's15', '0x20000', scc=False))
    e(salu('s_add_u32', 's36', 's36', '0x10000'))
    e(salu('s_addc_u32', 's37', 's37', '0'))
    e(salu('s_mov_b32', 's38', '0x8000', scc=False))
    e(salu('s_mov_b32', 's39', '0x20000', scc=False))
    pre = o['pre']
    kn, vn = 2, 0
    for i in range(pre):
        for x in flat(dma_v(vn)): e(x)
        vn += 1
        for x in flat(dma_k(kn)): e(x)
        kn += 1
    if o['code_prefetch']:
        e(raw('s_getpc_b64 s[56:57]', 'salu', wr=['s56', 's57']))
        e(valu('v_lshlrev_b32', v(V_PF + 1), '7', 'v0'))
        e(valu('v_min_u32', v(V_PF + 1), hex(o['pf_max']), v(V_PF + 1)))
        e(raw(f'global_load_dword {v(V_PF)}, {v(V_PF + 1)}, s[56:57]', 'vm_l', rd=[v(V_PF + 1), 's56', 's57'], wr=[v(V_PF)]))
    e(salu('s_add_u32', 's16', 's30', 's34'))
    e(salu('s_addc_u32', 's17', 's31', '0'))
    e(salu('s_mov_b32', 's18', '0x18000', scc=False))
    e(salu('s_mov_b32', 's19', '0x20000', scc=False))
    e(salu('s_mov_b32', S_C, hex(f32(C_SCALE)), scc=False))
    e(salu('s_mov_b32', S_NC, hex(f32(-C_SCALE)), scc=False))
    e(salu('s_mov_b32', 's40', '0x8000', scc=False))
    e(salu('s_mov_b32', 's41', '0x10000', scc=False))
    for j in range(4):
        e(salu('s_xor_b32', 's35', S_WAVE, str(j)))
        if o['fake_coal'] == 1: e(salu('s_mov_b32', S_ST(0, j), hex(2048 * j)))
        elif o['fake_coal'] == 2: e(salu('s_mov_b32', S_ST(0, j), hex((j & 1) * 128 + (j >> 1) * 4096)))
        else: e(salu('s_lshl_b32', S_ST(0, j), 's35', '6'))
        e(salu('s_add_u32', S_ST(1, j), S_ST(0, j), '0x8000'))
        e(salu('s_add_u32', S_ST(2, j), S_ST(0, j), '0x10000'))
    if o['wbl2_sel'] == 'wave0': e(salu('s_mov_b32', 's42', S_WAVE, scc=False))
    else:
        e(salu('s_lshr_b32', 's42', 's2', o['wbl2_sel']))
        e(salu('s_or_b32', 's42', 's42', S_WAVE))
    if o['fake_coal'] == 1:
        e(valu('v_lshlrev_b32', v(V_OOFF), '4', v(33)))
        e(valu('v_lshl_or_b32', v(V_OOFF), v(32), '13', v(V_OOFF)))
    elif o['fake_coal'] == 2:
        e(valu('v_and_b32', v(V_OOFF), '3', v(33)))
        e(valu('v_lshlrev_b32', v(V_OOFF), '4', v(V_OOFF)))
        e(valu('v_lshrrev_b32', v(36), '2', v(33)))
        e(valu('v_lshl_or_b32', v(V_OOFF), v(36), '8', v(V_OOFF)))
        e(valu('v_lshl_or_b32', v(V_OOFF), v(32), '13', v(V_OOFF)))
    else:
        e(valu('v_mov_b32', v(V_OOFF), v(V_QOFF)))
    e(valu('v_and_b32', v(36), '31', v(33)))
    e(valu('v_xor_b32', v(37), v(41), v(35)))
    e(valu('v_lshlrev_b32', v(37), '4', v(37)))
    e(valu('v_lshl_or_b32', v(V_AK), v(36), '8', v(37)))
    for s in range(1, 8):
        e(valu('v_xor_b32', v(V_AK + s), hex(s << 5), v(V_AK)))
    e(valu('v_and_b32', v(36), '3', v(33)))
    e(valu('v_bfe_u32', v(37), v(33), '2', '2'))
    e(valu('v_bfe_u32', v(38), v(33), '4', '1'))
    e(valu('v_lshl_or_b32', v(39), v(41), '2', v(37)))
    e(valu('v_lshlrev_b32', v(39), '8', v(39)))
    e(valu('v_lshl_or_b32', v(39), v(38), '5', v(39)))
    e(valu('v_lshl_or_b32', v(39), v(36), '3', v(39)))
    e(valu('v_xor_b32', v(37), v(37), v(32)))
    e(valu('v_lshl_or_b32', v(39), v(37), '6', v(39)))
    e(valu('v_add_u32', v(V_AV), hex(LDS_V), v(39)))
    for j in range(1, 4):
        e(valu('v_xor_b32', v(V_AV + j), hex(j << 6), v(V_AV)))
    e(valu('v_lshlrev_b32', v(36), '4', v(33)))
    e(valu('v_lshl_or_b32', v(V_AL2), v(32), '10', v(36)))
    for j in range(1, 4):
        e(valu('v_xor_b32', v(V_AL2 + j), hex(j << 10), v(V_AL2)))
    for j in range(4):
        e(valu('v_add_u32', v(V_AL + j), hex(LDS_V), v(V_AL2 + j)))
    def l2pf_code():
        c = []
        st = o['l2pf']
        lo = o['l2from'] * 0x2000
        share = (0x18000 - lo) // 4
        n = (share + st * 256 - 1) // (st * 256)
        c.append(salu('s_bfe_u32', 's98', 's2', '0x20003'))
        c.append(salu('s_mul_i32', 's98', 's98', hex(share), scc=False))
        c.append(salu('s_add_u32', 's98', 's98', hex(lo)))
        c.append(salu('s_add_u32', 's99', 's98', hex(LDS_V)))
        for k in range(n):
            c.append(valu('v_mul_u32_u24', v(44 + k), hex(st), 'v0'))
            if k: c.append(valu('v_add_u32', v(44 + k), hex(k * st * 256), v(44 + k)))
            c.append(valu('v_min_u32', v(44 + k), hex(share - st), v(44 + k)))
        l = []
        for k in range(n):
            l.append(raw(f'buffer_load_dword v{46 + k}, v{44 + k}, {S_K}, s98 offen', 'vm_l', rd=[v(44 + k), 's98'] + R(S_K), wr=[v(46 + k)]))
            l.append(raw(f'buffer_load_dword v{48 + k}, v{44 + k}, {S_V}, s99 offen', 'vm_l', rd=[v(44 + k), 's99'] + R(S_V), wr=[v(48 + k)]))
        return c, l
    if o['l2pf']:
        c, l2l = l2pf_code()
        for x in c: e(x)
        if o['l2pos'] == 'pro':
            for x in l2l: e(x)
    if o['stamps']: e(stamp())
    e(barrier(tok_r=['K0', 'K1']))
    if o['stamps']: e(stamp())
    if o['l2pf'] and o['l2pos'] == 'bar':
        for x in l2l: e(x)

    def kfrag_reg(t, s):
        i = t % 12
        return a(A_KR + 32 * i + 4 * s, 4) if i < 4 else a(A_RING + 4 * s, 4)
    def k_read(t, s):
        i = t % 12
        if i < 4:
            if t >= 12: return None
            return ds_read('ds_read_b128', kfrag_reg(t, s), v(V_AK + s), kslot(i))
        return ds_read('ds_read_b128', kfrag_reg(t, s), v(V_AK + s), kslot(i) - 0x8000)
    def vfrag_reg(t, y):
        j, ks = y & 3, y >> 2
        if t < 12 and j == 0: return A_W + 4 * ks
        return A_RING + 4 * y
    def v_reads(t, y):
        i = t % 12; j, ks = y & 3, y >> 2
        r = vfrag_reg(t, y)
        if t < 12:
            base = (i if i < 8 else i - 8) * 0x2000
            return [ds_read('ds_read_b64_tr_b16', a(r + 2 * u, 2), v(V_AV + j), base + (16 * ks + 8 * u) * 256) for u in range(2)]
        al = V_AL if i < 8 else V_AL2
        base = (i if i < 8 else i - 8) * 0x2000
        return [ds_read('ds_read_b128', a(r, 4), v(al + j), base + ks * 4096)]
    def w_write(t, ks):
        i = t
        al = V_AL if i < 8 else V_AL2
        base = (i if i < 8 else i - 8) * 0x2000
        return ds_write('ds_write_b128', v(al), a(A_W + 4 * ks, 4), base + ks * 4096, tok_w=[f'VL{i}'])
    def Sreg(t): return V_S + 16 * (t & 1)
    def Preg(t): return V_P + 8 * (t & 1)
    def qk_mfma(t, s):
        b = t // 12
        S = v(Sreg(t), 16)
        return mfma(S, kfrag_reg(t, s), a(A_Q[b & 1] + 4 * s, 4), '0' if s == 0 else S)
    def pv_mfma(t, y):
        b = t // 12; j, ks = y & 3, y >> 2
        O = v(V_O[b & 1] + 16 * j, 16)
        c = '0' if (t % 12 == 0 and ks == 0) else O
        return mfma(O, a(vfrag_reg(t, y), 4), v(Preg(t) + 4 * ks, 4), c)

    gaps = []
    G = {}
    def add_gap(key, m, cap=6):
        g = Gap(m, cap, name=str(key)); G[key] = len(gaps); gaps.append(g); return g
    g0 = add_gap(('pre', 0), None, cap=99)
    for s in range(8): g0.mem.append(k_read(0, s))
    g0.post.append(placeholder())
    for s in range(8):
        g = add_gap((-1, 8 + s), qk_mfma(0, s))
        g.mem.append(k_read(1, s))
        g.ph = (s & 1) == 1
    gaps[G[(-1, 15)]].sc += [barrier(tok_r=['V0', 'K2'])]
    gaps[G[(-1, 15)]].ph = True
    for x in range(8):
        g = add_gap((0, x), qk_mfma(1, x))
        g.mem += v_reads(0, x)
        g.ph = (x & 1) == 1
    for x in range(8, 16):
        g = add_gap((0, x), None, cap=8)
        g.ph = (x == 15)
    for t in range(1, 37):
        for x in range(16):
            if t == 36: break
            if t == 35 and x >= 8: break
            if x < 8:
                g = add_gap((t, x), pv_mfma(t - 1, x))
                if t + 1 <= 35:
                    r = k_read(t + 1, x)
                    if r: g.mem.append(r)
                if t == 35:
                    g.mem += v_reads(35, x)
            else:
                g = add_gap((t, x), qk_mfma(t + 1, x - 8))
                g.mem += v_reads(t, x - 8)
            g.ph = (x & 1) == 1
    for x in range(8, 12):
        g = add_gap((35, x), pv_mfma(35, x - 8)); g.ph = True
    for x in range(12, 14):
        g = add_gap((35, x), None, cap=8); g.ph = True
    for x in range(14, 18):
        g = add_gap((35, x), pv_mfma(35, x - 10)); g.ph = True
    NT = 40
    for x in range(18, 18 + NT):
        g = add_gap((35, x), None, cap=8)

    def GG(t, x):
        while (t, x) not in G:
            if x >= 16 and t < 35: t += 1; x -= 16
            else: raise KeyError((t, x))
        return G[(t, x)]

    for t in range(1, 14):
        toks = []
        if t <= 11: toks.append(f'V{t}')
        if t + 2 <= 11: toks.append(f'K{t + 2}')
        if t >= 2: toks.append(f'VL{t - 2}')
        g = gaps[G[(t, 7)]]
        g.sc.append(barrier(tok_r=toks)); g.ph = True
        if t - 1 <= 11:
            g.mem.append(w_write(t - 1, 0))
            gaps[G[(t, 9)]].mem.insert(0, w_write(t - 1, 1))
    for t in range(0, 12):
        if kn <= 11:
            d = dma_k(kn); kn += 1
            gaps[G[(t, 2)]].sc += d[0]; gaps[G[(t, 3)]].mem.append(d[1]); gaps[G[(t, 4)]].mem.append(d[2])
        if vn <= 11 and (vn < 8 or t >= vn - 8 + 1 or t >= 4):
            d = dma_v(vn); vn += 1
            gaps[G[(t, 10)]].sc += d[0]; gaps[G[(t, 11)]].mem.append(d[1]); gaps[G[(t, 12)]].mem.append(d[2])
    assert kn == 12 and vn == 12
    for s in range(8):
        t = o['qb_start'] + s // 2
        gaps[G[(t, 6 if s % 2 == 0 else 14)]].mem.append(q_load(1, s))

    items = []
    for s in range(8):
        items.append(Item(valu('v_add_u32', v(V_AK + s), '0x8000', v(V_AK + s)), GG(2, 8), GG(2, 15)))
    for j in range(4):
        items.append(Item(valu('v_subrev_u32', v(V_AV + j), hex(LDS_V), v(V_AV + j)), GG(8, 0), GG(8, 6)))

    lastA = {}
    hard = []
    for t in range(36):
        b, i = t // 12, t % 12
        S = Sreg(t); Pr = Preg(t)
        mc = v(V_MC + (b & 1)); l = [V_L + 2 * (b & 1), V_L + 2 * (b & 1) + 1]
        rel0 = GG(t, 1)
        fdeps = []
        shift = 0
        if i == 0:
            T = V_T
            m1 = Item([valu('v_max3_f32', v(T), v(S), v(S + 1), v(S + 2)),
                       valu('v_max3_f32', v(T + 1), v(S + 3), v(S + 4), v(S + 5)),
                       valu('v_max3_f32', v(T), v(T), v(S + 6), v(S + 7)),
                       valu('v_max3_f32', v(T + 1), v(T + 1), v(S + 8), v(S + 9))], rel0, rel0)
            m2 = Item([valu('v_max3_f32', v(T), v(T), v(S + 10), v(S + 11)),
                       valu('v_max3_f32', v(T + 1), v(T + 1), v(S + 12), v(S + 13)),
                       valu('v_max3_f32', v(T), v(T), v(S + 14), v(S + 15)),
                       valu('v_max_f32', v(T), v(T), v(T + 1)),
                       valu('v_max_f32', v(T + 1), v(T), v(T + 1))], rel0, rel0 + 1, deps=[(m1, 0)])
            m3 = Item([perm32(v(T), v(T + 1))], rel0, rel0 + 2, deps=[(m2, 1)])
            m4 = Item([valu('v_max_f32', v(T), v(T), v(T + 1)),
                       valu('v_mul_f32', mc, S_NC, v(T))], rel0, rel0 + 2, deps=[(m3, 0)])
            items += [m1, m2, m3, m4]
            fdeps = [(m4, 0)]
            shift = 2
        prevA = [None, None]
        Es = []
        fast = (t == 35 or t == 0)
        for el in range(16):
            if fast:
                df = GG(t, 1 + shift + el // 2 + (0 if el < 8 else 2))
                if t == 35: df = GG(t, 1 + (el * 3) // 4)
            elif shift:
                df = GG(t, 1 + shift + (el * 14) // 16)
            else:
                df = GG(t, 1 + el)
            cons = (GG(35, 8 if el < 8 else 14) if t == 35 else GG(t + 1, 0 if el < 8 else 4))
            df = min(df, cons - 3)
            F = Item(valu('v_fma_f32', v(S + el), v(S + el), S_C, mc), rel0, df, deps=fdeps)
            E = Item(valu('v_exp_f32', v(S + el), v(S + el)), rel0, df + 1, deps=[(F, 0)])
            if i == 0 and el < 2:
                A = Item(valu('v_mov_b32', v(l[el & 1]), v(S + el)), rel0, df + 3, deps=[(E, 1)])
            else:
                A = Item(valu('v_add_f32', v(l[el & 1]), v(l[el & 1]), v(S + el)), rel0, df + 3,
                         deps=[(E, 1)] + ([(prevA[el & 1], 0)] if prevA[el & 1] else []) + ([(lastA[(t - 1, el & 1)], 0)] if el < 2 and i > 0 else []))
            prevA[el & 1] = A
            Es.append(E)
            items += [F, E, A]
            if el & 1:
                Cv = Item(valu('v_cvt_pk_bf16_f32', v(Pr + el // 2), v(S + el - 1), v(S + el)), rel0, df + 2, deps=[(Es[el - 1], 1), (E, 1)])
                items.append(Cv); hard.append((Cv, cons))
        lastA[(t, 0)] = prevA[0]; lastA[(t, 1)] = prevA[1]

    for b in range(3):
        O = V_O[b & 1]; l = [V_L + 2 * (b & 1), V_L + 2 * (b & 1) + 1]
        tl = 12 * b + 11
        LT = V_LT
        if b < 2:
            r0 = GG(12 * b + 13, 8); step = 1
        else:
            r0 = GG(35, 12)
        c1 = Item([valu('v_add_f32', v(LT), v(l[0]), v(l[1])), valu('v_add_f32', v(LT + 1), v(l[0]), v(l[1]))], r0, r0 + 1,
                  deps=[(lastA[(tl, 0)], 0), (lastA[(tl, 1)], 0)])
        c2 = Item([perm32(v(LT), v(LT + 1))], r0, r0 + 2, deps=[(c1, 1)])
        chk = [valu('v_add_f32', v(LT), v(LT), v(LT + 1))]
        if o['slow']:
            chk += [raw(f'v_cmp_nge_f32 vcc, {hex(o["thresh"])}, {v(LT)}', 'valu', rd=[v(LT)], wr=['vcc'])]
        chk += [valu('v_rcp_f32', v(LT), v(LT))]
        c3 = Item(chk, r0, r0 + 3, deps=[(c2, 0)])
        br = []
        if o['slow']:
            br = [raw(f's_cbranch_vccz L_OK{b}', 'branch', rd=['vcc']),
                  raw(f's_call_b64 {S_RET}, L_SLOW{b & 1}', 'branch'),
                  label(f'L_OK{b}')]
            br[-2].w = 0; br[-1].w = 0
        if b < 2:
            c4 = Item(br, r0, r0 + 4, deps=[(c3, 0)])
        else:
            c4 = Item(br, GG(35, 17), GG(35, 17), deps=[(c3, 0)])
        items += [c1, c2, c3, c4]
        if b == 0:
            for s in range(8):
                t = 14 + s // 2
                gaps[G[(t, 5 if s % 2 == 0 else 13)]].mem.append(q_load(2, s))
        for j in range(4):
            for hh in range(2):
                R0 = O + 16 * j + 8 * hh
                k = 2 * j + hh
                if b < 2:
                    rr = r0; dl = GG(12 * b + 15, 0) + (k + 1) * (19 if b == 0 else 15)
                else:
                    rr = GG(35, 17); dl = rr + 2 * k + 2
                muls = [Item(valu('v_mul_f32', v(R0 + q), v(R0 + q), v(LT)), rr, dl - 4 if b < 2 else dl, deps=[(c4, 0), (c3, 1)]) for q in range(8)]
                cv = [Item(valu('v_cvt_pk_bf16_f32', v(R0 + q), v(R0 + 2 * q), v(R0 + 2 * q + 1)), rr, dl - 3 if b < 2 else dl,
                           deps=[(muls[2 * q], 0), (muls[2 * q + 1], 0)]) for q in range(4)]
                for q in range(1, 4): cv[q].deps.append((cv[q - 1], 0))
                sw = Item([perm32(v(R0), v(R0 + 2)), perm32(v(R0 + 1), v(R0 + 3))], rr, dl - 1 if b < 2 else dl + 1, deps=[(cv[3], 1)])
                st = Item([buf_store(v(R0, 4), v(V_OOFF), S_O, S_ST(b, j), [32, 1024, 64][o['fake_coal']] * hh, o['store_mods'] if not isinstance(o['store_mods'], list) else o['store_mods'][b])], rr, dl + 1 if b < 2 else dl + 2, deps=[(sw, 1)])
                st.mem = True
                items += muls + cv + [sw, st]

    for n, key in enumerate(o['wbl2']):
        g = gaps[G[tuple(key)]]
        g.sc += [raw('s_cmp_eq_u32 s42, 0'), raw(f's_cbranch_scc0 L_WB{n}', 'branch'), raw('buffer_wbl2 sc1', 'vm_s'), label(f'L_WB{n}')]
    if o['stamps']:
        for key in ([(-1, 9), (0, 0), (1, 0), (4, 0), (8, 0), (12, 0), (18, 0), (24, 0), (30, 0), (35, 0), (35, 17)] if not o.get('fine') else
                    [(-1, 8), (-1, 15), (0, 0), (1, 0), (2, 0), (4, 0), (8, 0), (12, 0), (24, 0)]):
            gaps[G[key]].sc.append(stamp())
    schedule(gaps, items, log)
    for it, cons in hard: assert it.gap < cons, (it.ins, it.gap, cons)

    M = []
    over = 0
    for gi, g in enumerate(gaps):
        if g.m: M.append(g.m)
        if g.ph: M.append(placeholder())
        M += g.sc
        mem2 = [i for i in g.va if i.kind == 'vm_s']
        M += g.mem + mem2
        M += [i for i in g.va if i.kind != 'vm_s']
        M += g.post
        if g.m and g.used() > g.cap: over += g.used() - g.cap
    log.append(f'slot overflow in MFMA gaps: {over}')
    tailc = []
    if o['stamps']:
        n = nst[0]
        tailc += [stamp(), wait(vm=0), stamp(), wait(lgkm=0),
                  raw('s_mov_b32 s56, s60'), raw('s_and_b32 s57, s61, 0xffff'), raw('s_mov_b32 s58, 0x100000'), raw('s_mov_b32 s59, 0x20000')]
        n = nst[0]
        assert n <= 16
        if o.get('dbg') is not None:
            for k in range(n - 1, -1, -1):
                tailc.append(raw(f's_sub_u32 s{62 + 2 * k}, s{62 + 2 * k}, s62'))
            tailc += [raw('s_mov_b32 s58, 64'), raw('s_lshl_b32 s3, s2, 2'), raw('s_add_u32 s3, s3, s22'), raw(f's_cmp_eq_u32 s3, {o["dbg"]}'), raw('s_cbranch_scc0 L_END', 'branch')]
        for k in range(16):
            tailc.append(raw(f'v_mov_b32 v{48 + k}, ' + (f's{62 + 2 * k}' if k < n else '0'), 'valu', wr=[f'v{48 + k}']))
        tailc += [raw('s_lshl_b32 s3, s2, 8'), raw('s_lshl_b32 s34, s22, 6'), raw('s_add_u32 s3, s3, s34') if o.get('dbg') is None else raw('s_mov_b32 s3, 0'),
                  raw('v_mov_b32 v47, 0', 'valu', wr=['v47']), nop(2)]
        for k in range(4):
            tailc.append(raw(f'buffer_store_dwordx4 v[{48 + 4 * k}:{51 + 4 * k}], v47, s[56:59], s3 offen offset:{16 * k}', 'vm_s'))
    body = P + M + tailc
    body, forced = insert_waits(body, log)
    body, nops = fix_hazards(body, log)
    log.append(f'forced waits {forced}, nop states {nops}')
    text = render(body) + 'L_END:\n  s_endpgm\n'
    if o['slow']:
        for par in range(2):
            sp = slow_path(par)
            sp, _ = insert_waits(sp, None)
            sp, _ = fix_hazards(sp, None)
            text += render(sp)
    return text, log, gaps

def slow_path(par):
    L = []
    e = L.append
    O = V_O[par]; Q = A_Q[par]
    SS, SP = V_SS, V_SP
    MX, MC, LL, TT = V_SM, V_SM + 1, V_SM + 2, V_SM + 3
    e(label(f'L_SLOW{par}'))
    e(wait(lgkm=0)); e(nop(8)); e(nop(8))
    def qk(i):
        for s in range(8):
            if i < 4:
                kr = a(A_KR + 32 * i + 4 * s, 4)
            else:
                kr = a(A_SF + 4 * (s % 4), 4)
                if s % 4 == 0:
                    for s2 in range(s, s + 4):
                        e(ds_read('ds_read_b128', a(A_SF + 4 * (s2 % 4), 4), v(V_AK + s2), kslot(i) - 0x8000))
            e(mfma(v(SS, 16), kr, a(Q + 4 * s, 4), '0' if s == 0 else v(SS, 16)))
            if i >= 4 and s % 4 == 3: e(nop(8))
    for i in range(12):
        qk(i)
        for q in range(8):
            if i == 0 and q == 0:
                e(valu('v_max_f32', v(MX), v(SS), v(SS + 1)))
            else:
                e(valu('v_max3_f32', v(MX), v(MX), v(SS + 2 * q), v(SS + 2 * q + 1)))
    e(valu('v_mov_b32', v(TT), v(MX)))
    e(perm32(v(MX), v(TT)))
    e(valu('v_max_f32', v(MX), v(MX), v(TT)))
    e(valu('v_mul_f32', v(MC), S_NC, v(MX)))
    e(valu('v_mov_b32', v(LL), '0'))
    for i in range(12):
        qk(i)
        for el in range(16): e(valu('v_fma_f32', v(SS + el), v(SS + el), S_C, v(MC)))
        for el in range(16): e(valu('v_exp_f32', v(SS + el), v(SS + el)))
        for el in range(16): e(valu('v_add_f32', v(LL), v(LL), v(SS + el)))
        for q in range(8): e(valu('v_cvt_pk_bf16_f32', v(SP + q), v(SS + 2 * q), v(SS + 2 * q + 1)))
        al = V_AL if i < 8 else V_AL2
        base = (i if i < 8 else i - 8) * 0x2000
        for ks in range(2):
            for j in range(4):
                e(ds_read('ds_read_b128', a(A_SF + 4 * j, 4), v(al + j), base + ks * 4096))
            for j in range(4):
                Oj = v(O + 16 * j, 16)
                e(mfma(Oj, a(A_SF + 4 * j, 4), v(SP + 4 * ks, 4), '0' if (i == 0 and ks == 0) else Oj))
            e(nop(8))
    e(valu('v_mov_b32', v(TT), v(LL)))
    e(perm32(v(LL), v(TT)))
    e(valu('v_add_f32', v(V_LT), v(LL), v(TT)))
    e(valu('v_rcp_f32', v(V_LT), v(V_LT)))
    e(nop(8)); e(nop(8))
    e(raw(f's_setpc_b64 {S_RET}', 'branch'))
    return L

HEADER = open('standalone__gqa_softmax__near_ridge.s.ref').read().split('; Override launch')[0]

def full(opt):
    text, log, gaps = gen(opt)
    s = HEADER + '; @launch grid=(256,1,1) block=(256,1,1) lds=163840\n'
    s += f'''.amdgcn_target "amdgcn-amd-amdhsa--gfx950"
.text
.globl {KNAME}
.p2align 8
.type {KNAME},@function
{KNAME}:
'''
    s += text
    s += f'''.section .rodata,"a"
.p2align 6
.amdhsa_kernel {KNAME}
  .amdhsa_next_free_vgpr 512
  .amdhsa_next_free_sgpr 102
  .amdhsa_accum_offset 256
  .amdhsa_group_segment_fixed_size 0
  .amdhsa_kernarg_size 48
  .amdhsa_user_sgpr_count 2
  .amdhsa_user_sgpr_kernarg_segment_ptr 1
  .amdhsa_system_sgpr_workgroup_id_x 1
.end_amdhsa_kernel
'''
    return s, log, gaps

if __name__ == '__main__':
    import json
    out = sys.argv[1]
    opt = json.loads(sys.argv[2]) if len(sys.argv) > 2 else {}
    s, log, gaps = full(opt)
    open(out, 'w').write(s)
    for l in log: print(l)
    print('used per gap:')
    line = ''
    for g in gaps:
        line += f'{g.used():x}' if g.m else f'({g.used()})'
        if g.name.endswith('15)'): print(g.name, line); line = ''
    print(line)
```

```python
import sys, struct, math
sys.path.insert(0, 'gen')
from core import *

KNAME = 'standalone__gqa_softmax__near_ridge_kernel'

DEFAULT = dict(
    pro=['K0', 'K1', 'Q', 'V0', 'K2', 'V1', 'K3'],
    dma_pos=[0, 4, 8, 12],
    bars=[1, 2, 3, 4, 5, 6, 7, 8, 9, 10, 11],
    qb_start=6, qb_rate=2,
    qc_start=14,
    store_mods='sc1',
    q_mods='', kv_mods='',
    code_prefetch=True, pf_max=0x6800,
    slow=True,
    stamps=False, fine=0, dbg=None,
    thresh=0x47800000,
    orderC=[0, 1, 2, 3, 4, 6, 7, 8, 9, 10, 11, 5],
    ep_span=[100, 80],
    ww=2,
    q_lds=True,
    nostore=False,
    tail_pk=True,
)

NRES = 6
S_Q, S_K, S_V, S_O, S_V2 = 's[4:7]', 's[8:11]', 's[12:15]', 's[16:19]', 's[36:39]'
S_C = 's20'; S_W2K = 's21'; S_WAVE = 's22'; S_NC = 's23'
S_RET = 's[32:33]'
S_QB = ['0', 's40', 's41']
def S_ST(b, kh): return ['0', 's44', 's40', 's45', 's41', 's46'][2 * b + kh]
S_WS = 's[52:55]'
V_AK = [1, 9]
V_AV = 17
V_KOFF0, V_KOFF1, V_VOFF, V_QOFF, V_OOFF = 21, 22, 23, 24, 25
V_L = 26; V_MC = 30; V_T = 32
V_SW = 34; V_SR = 38
V_LT = 40; V_PF = 42
V_RING = 48
V_P = 80; V_S = 96
V_O = [128, 192]
A_VR = 0; A_Q = [192, 224]

LDS_V = 0x18000
LDS_STG = 0x20000
LDS_QA = 0x10000
def kslot(i): return i * 0x2000
def vslot(i): return LDS_V + (i & 7) * 0x2000

def v(n, c=1): return rng('v', n, c)
def a(n, c=1): return rng('a', n, c)

C_SCALE = 128 ** -0.5 * math.log2(math.e)
def f32(x): return struct.unpack('<I', struct.pack('<f', x))[0]
MEMK = ('vm_s', 'ds_w', 'ds_r', 'vm_l', 'dma')

class Gap:
    def __init__(self, m=None, cap=6, name=''):
        self.m = m; self.cap = cap; self.sc = []; self.mem = []; self.va = []; self.ph = False; self.name = name
        self.post = []
    def used(self):
        return sum(i.w for i in self.mem) + sum(i.w for i in self.va) + max(0, len(self.sc) + (1 if self.ph else 0) - 1)
    def nmem(self):
        return len(self.mem) + sum(1 for i in self.va if i.kind in MEMK)

class Item:
    def __init__(self, ins, rel, dl, deps=(), mem=False):
        self.ins = ins if isinstance(ins, list) else [ins]
        self.rel = rel; self.dl = dl; self.deps = list(deps); self.gap = None; self.mem = mem
        self.w = sum(i.w for i in self.ins)

def schedule(gaps, items, log):
    pend = sorted(items, key=lambda it: (it.dl, it.rel))
    for g, gap in enumerate(gaps):
        progress = True
        while progress:
            progress = False
            for it in pend:
                if it.rel > g: continue
                ok = all(d.gap is not None and d.gap + dist <= g for d, dist in it.deps)
                if not ok: continue
                room = gap.cap - gap.used()
                fits = it.w <= room
                if it.mem and gap.m and gap.nmem() >= 2: fits = False
                if fits or it.dl <= g:
                    gap.va += it.ins; it.gap = g; pend.remove(it); progress = True
                    break
    if pend:
        raise RuntimeError(f'unscheduled: {[(it.ins, it.rel, it.dl) for it in pend[:5]]}')

def k_read(tile, s, dst):
    w = tile >> 3
    return ds_read('ds_read_b128', dst, v(V_AK[w] + s), kslot(tile & 7))
def v_read(tile, j, ks, pfx, r):
    base = (tile & 7) * 0x2000
    return [ds_read('ds_read_b64_tr_b16', rng(pfx, r + 2 * u, 2), v(V_AV + j), base + (16 * ks + 8 * u) * 256) for u in range(2)]

def gen(opt):
    o = dict(DEFAULT); o.update(opt)
    log = []
    P = []
    nst = [0]
    def stamp():
        k = nst[0]; nst[0] += 1
        op = 's_memtime' if o['stamps'] == 'cyc' else 's_memrealtime'
        return raw(f'{op} s[{62 + 2 * k}:{63 + 2 * k}]', 'smem')
    e = P.append
    order = [list(range(12)), list(range(12)), o['orderC']]
    def T(t): return order[t // 12][t % 12]
    TW, TL, TR4, TP, TA, TB, TC, TH = [100 + i for i in range(8)]
    V_QR = 112
    e(raw('s_cmp_ge_u32 s2, 0x100'))
    e(raw('s_cbranch_scc1 L_END', 'branch'))
    e(raw('s_load_dwordx8 s[24:31], s[0:1], 0', 'smem', wr=regs('s', 24, 8)))
    if o['stamps']:
        e(raw('s_load_dwordx2 s[60:61], s[0:1], %d' % (32 if o['dbg'] is not None else 40), 'smem'))
        e(stamp())
    e(valu('v_lshrrev_b32', v(TW), '6', 'v0'))
    e(valu('v_and_b32', v(TL), '63', 'v0'))
    e(salu('s_and_b32', 's3', 's2', '7'))
    e(raw(f'v_readfirstlane_b32 {S_WAVE}, {v(TW)}', 'valu', rd=[v(TW)], wr=[S_WAVE]))
    e(salu('s_lshr_b32', 's34', 's2', '5'))
    e(salu('s_lshl_b32', 's34', 's34', '3'))
    e(salu('s_or_b32', 's3', 's3', 's34'))
    e(salu('s_bfe_u32', 's34', 's2', '0x20003'))
    e(salu('s_lshl_b32', 's35', 's3', '2'))
    e(salu('s_or_b32', 's34', 's34', 's35'))
    e(salu('s_mul_i32', 's3', 's3', '0x18000', scc=False))
    e(salu('s_mul_i32', 's34', 's34', '0x18000', scc=False))
    e(valu('v_lshrrev_b32', v(TR4), '4', v(TL)))
    e(valu('v_and_b32', v(TP), '15', v(TL)))
    e(valu('v_and_b32', v(TA), '1', v(TW)))
    e(valu('v_lshl_or_b32', v(TA), v(TA), '3', v(TR4)))
    e(valu('v_xor_b32', v(TB), v(TP), v(TA)))
    e(valu('v_lshlrev_b32', v(TC), '8', v(TR4)))
    e(valu('v_lshl_or_b32', v(V_KOFF0), v(TB), '4', v(TC)))
    e(valu('v_xor_b32', v(V_KOFF1), '64', v(V_KOFF0)))
    e(salu('s_lshl_b32', S_W2K, S_WAVE, '11'))
    e(salu('s_mov_b32', 's10', '0x18000', scc=False))
    e(salu('s_mov_b32', 's11', '0x20000', scc=False))
    e(salu('s_mov_b32', 'm0', S_W2K, scc=False))
    e(salu('s_lshl_b32', 's42', S_WAVE, '13'))
    e(salu('s_mov_b32', 's6', '0x18000', scc=False))
    e(salu('s_mov_b32', 's7', '0x20000', scc=False))
    e(valu('v_and_b32', v(TA), '31', v(TL)))
    e(valu('v_lshl_or_b32', v(TA), v(TW), '5', v(TA)))
    e(valu('v_lshrrev_b32', v(TH), '5', v(TL)))
    e(valu('v_lshlrev_b32', v(TB), '4', v(TH)))
    e(valu('v_lshl_or_b32', v(V_QOFF), v(TA), '8', v(TB)))
    e(valu('v_lshlrev_b32', v(TA), '2', v(TR4)))
    e(valu('v_xor_b32', v(TB), v(TP), v(TA)))
    e(valu('v_lshl_or_b32', v(V_VOFF), v(TB), '4', v(TC)))
    e(salu('s_mov_b32', 's14', '0x30000', scc=False))
    e(salu('s_mov_b32', 's15', '0x20000', scc=False))
    e(wait(lgkm=0))
    if o['stamps'] and o['fine']: e(stamp())
    e(salu('s_add_u32', 's8', 's26', 's3'))
    e(salu('s_addc_u32', 's9', 's27', '0'))
    e(salu('s_add_u32', 's4', 's24', 's34'))
    e(salu('s_addc_u32', 's5', 's25', '0'))

    def dma(name):
        i = int(name[1:])
        if name[0] == 'K':
            return [[salu('s_add_u32', 'm0', S_W2K, hex(kslot(i)))],
                    buf_dma(v(V_KOFF0), S_K, 'm0', 0, name, o['kv_mods']),
                    buf_dma(v(V_KOFF1), S_K, 'm0', 1024, name, o['kv_mods'])]
        srd = S_V if i < 8 else S_V2
        return [[salu('s_add_u32', 'm0', S_W2K, hex(vslot(i)))],
                buf_dma(v(V_VOFF), srd, 'm0', 0, name, o['kv_mods']),
                buf_dma(v(V_VOFF), srd, 'm0', 1024, name, o['kv_mods'])]
    def q_load(b, s):
        return buf_load(a(A_Q[b & 1] + 4 * s, 4), v(V_QOFF), S_Q, S_QB[b], 32 * s, o['q_mods'])
    vsrd_done = False
    first = True
    for name in o['pro']:
        if name == 'Q':
            if o['q_lds']:
                for u in range(4):
                    e(salu('s_add_u32', 'm0', S_W2K, hex(LDS_QA + u * 0x2000)))
                    if u: e(salu('s_add_u32', 's42', 's42', '0x800'))
                    e(buf_dma(v(V_KOFF0), S_Q, 's42', 0, 'QA', o['q_mods']))
                    e(buf_dma(v(V_KOFF1), S_Q, 's42', 1024, 'QA', o['q_mods']))
            else:
                for s in range(8): e(q_load(0, s))
            if o['stamps'] and o['fine']: e(stamp())
            continue
        if name[0] == 'V' and not vsrd_done:
            vsrd_done = True
            e(salu('s_add_u32', 's36', 's28', 's3'))
            e(salu('s_addc_u32', 's37', 's29', '0'))
            e(salu('s_sub_u32', 's12', 's36', hex(LDS_V)))
            e(salu('s_subb_u32', 's13', 's37', '0'))
        d = dma(name)
        if first:
            assert name == 'K0'
            d[0] = []; first = False
        for x in d[0] + d[1:]: e(x)
    assert vsrd_done
    if o['code_prefetch']:
        e(raw('s_getpc_b64 s[56:57]', 'salu', wr=['s56', 's57']))
        e(valu('v_lshlrev_b32', v(V_PF + 1), '7', 'v0'))
        e(valu('v_min_u32', v(V_PF + 1), hex(o['pf_max']), v(V_PF + 1)))
        e(raw(f'global_load_dword {v(V_PF)}, {v(V_PF + 1)}, s[56:57]', 'vm_l', rd=[v(V_PF + 1), 's56', 's57'], wr=[v(V_PF)]))
    e(salu('s_sub_u32', 's36', 's36', '0x8000'))
    e(salu('s_subb_u32', 's37', 's37', '0'))
    e(salu('s_mov_b32', 's38', '0x20000', scc=False))
    e(salu('s_mov_b32', 's39', '0x20000', scc=False))
    e(salu('s_add_u32', 's16', 's30', 's34'))
    e(salu('s_addc_u32', 's17', 's31', '0'))
    e(salu('s_mov_b32', 's18', '0x18000', scc=False))
    e(salu('s_mov_b32', 's19', '0x20000', scc=False))
    e(salu('s_mov_b32', S_C, hex(f32(C_SCALE)), scc=False))
    e(salu('s_mov_b32', S_NC, hex(f32(-C_SCALE)), scc=False))
    e(salu('s_mov_b32', 's40', '0x8000', scc=False))
    e(salu('s_mov_b32', 's41', '0x10000', scc=False))
    e(salu('s_mov_b32', 's44', '0x1000', scc=False))
    e(salu('s_mov_b32', 's45', '0x9000', scc=False))
    e(salu('s_mov_b32', 's46', '0x11000', scc=False))
    e(valu('v_and_b32', v(TA), '31', v(TL)))
    e(valu('v_xor_b32', v(TB), v(TH), v(TP)))
    e(valu('v_lshlrev_b32', v(TB), '4', v(TB)))
    e(valu('v_lshl_or_b32', v(V_AK[0]), v(TA), '8', v(TB)))
    for s in range(1, 8):
        e(valu('v_xor_b32', v(V_AK[0] + s), hex(s << 5), v(V_AK[0])))
    if o['q_lds']:
        e(valu('v_and_b32', v(TB), '7', v(TL)))
        e(valu('v_bfe_u32', v(TC), v(TL), '3', '2'))
        e(valu('v_lshlrev_b32', v(TC), '13', v(TC)))
        e(valu('v_lshl_or_b32', v(TC), v(TW), '11', v(TC)))
        e(valu('v_lshl_or_b32', v(TC), v(TB), '8', v(TC)))
        e(valu('v_xor_b32', v(TB), v(TB), v(TH)))
        e(valu('v_and_b32', v(V_QR), '1', v(TW)))
        e(valu('v_lshl_or_b32', v(TB), v(V_QR), '3', v(TB)))
        e(valu('v_lshl_or_b32', v(TC), v(TB), '4', v(TC)))
        e(valu('v_add_u32', v(V_QR), hex(LDS_QA), v(TC)))
        for s in range(1, 8):
            e(valu('v_xor_b32', v(V_QR + s), hex(s << 5), v(V_QR)))
    for s in range(8):
        e(valu('v_add_u32', v(V_AK[1] + s), '0x10000', v(V_AK[0] + s)))
    e(valu('v_bfe_u32', v(TB), v(TL), '2', '2'))
    e(valu('v_lshl_or_b32', v(TC), v(TH), '2', v(TB)))
    e(valu('v_lshlrev_b32', v(TC), '8', v(TC)))
    e(valu('v_lshl_or_b32', v(TC), v(TB), '6', v(TC)))
    e(valu('v_bfe_u32', v(TB), v(TL), '4', '1'))
    e(valu('v_lshl_or_b32', v(TC), v(TB), '5', v(TC)))
    e(valu('v_and_b32', v(TB), '1', v(TL)))
    e(valu('v_lshl_or_b32', v(TC), v(TB), '4', v(TC)))
    e(valu('v_bfe_u32', v(TB), v(TL), '1', '1'))
    e(valu('v_lshl_or_b32', v(TC), v(TB), '3', v(TC)))
    e(valu('v_add_u32', v(V_AV), hex(LDS_V), v(TC)))
    for j in range(1, 4):
        e(valu('v_xor_b32', v(V_AV + j), hex(j << 6), v(V_AV)))
    e(valu('v_bfe_u32', v(TB), v(TL), '1', '3'))
    e(valu('v_xor_b32', v(TB), v(TB), v(TH)))
    e(valu('v_lshlrev_b32', v(TB), '4', v(TB)))
    e(valu('v_lshl_or_b32', v(TB), v(TA), '7', v(TB)))
    e(valu('v_lshl_or_b32', v(TB), v(TW), '12', v(TB)))
    e(valu('v_add_u32', v(V_SW), hex(LDS_STG), v(TB)))
    for i in range(1, 4):
        e(valu('v_xor_b32', v(V_SW + i), hex(i << 5), v(V_SW)))
    e(valu('v_and_b32', v(TB), '7', v(TL)))
    e(valu('v_lshrrev_b32', v(TC), '3', v(TL)))
    e(valu('v_lshlrev_b32', v(V_OOFF), '4', v(TB)))
    e(valu('v_lshl_or_b32', v(V_OOFF), v(TC), '8', v(V_OOFF)))
    e(valu('v_lshl_or_b32', v(V_OOFF), v(TW), '13', v(V_OOFF)))
    e(valu('v_xor_b32', v(TB), v(TB), v(TR4)))
    e(valu('v_lshlrev_b32', v(TB), '4', v(TB)))
    e(valu('v_lshl_or_b32', v(TB), v(TC), '7', v(TB)))
    e(valu('v_lshl_or_b32', v(TB), v(TW), '12', v(TB)))
    e(valu('v_add_u32', v(V_SR), hex(LDS_STG), v(TB)))
    e(valu('v_xor_b32', v(V_SR + 1), '64', v(V_SR)))
    if o['stamps']: e(stamp())
    e(barrier(tok_r=['K0', 'K1']))
    if o['stamps']: e(stamp())

    def ring(x): return V_RING + 4 * x
    def vfrag(t, y):
        i = T(t)
        if i < NRES: return a(A_VR + 32 * i + 4 * y, 4)
        return v(ring(y), 4)
    def v_reads(t, y):
        i = T(t); j, ks = y & 3, y >> 2
        if i < NRES:
            if t >= 12: return []
            return v_read(i, j, ks, 'a', A_VR + 32 * i + 4 * y)
        return v_read(i, j, ks, 'v', ring(y))
    def Sreg(t): return V_S + 16 * (t & 1)
    def Preg(t): return V_P + 8 * (t & 1)
    def qk_mfma(t, s):
        b = t // 12
        S = v(Sreg(t), 16)
        return mfma(S, v(ring(s), 4), a(A_Q[b & 1] + 4 * s, 4), '0' if s == 0 else S)
    def pv_mfma(t, y):
        b = t // 12; j, ks = y & 3, y >> 2
        O = v(V_O[b & 1] + 16 * j, 16)
        c = '0' if (t % 12 == 0 and ks == 0) else O
        return mfma(O, vfrag(t, y), v(Preg(t) + 4 * ks, 4), c)

    gaps = []
    G = {}
    def add_gap(key, m, cap=6):
        g = Gap(m, cap, name=str(key)); G[key] = len(gaps); gaps.append(g); return g
    g0 = add_gap(('pre', 0), None, cap=99)
    for s in range(8): g0.mem.append(k_read(0, s, v(ring(s), 4)))
    if o['q_lds']:
        for s in range(8):
            g0.mem.append(ds_read('ds_read_b128', a(A_Q[0] + 4 * s, 4), v(V_QR + s), 0, tok_r=['QA']))
    g0.post.append(placeholder())
    for s in range(8):
        g = add_gap((-1, 8 + s), qk_mfma(0, s))
        g.mem.append(k_read(1, s, v(ring(s), 4)))
        g.ph = True
    for x in range(8):
        g = add_gap((0, x), qk_mfma(1, x))
        g.mem += v_reads(0, x)
        g.ph = (x & 1) == 1
    for x in range(8, 16):
        g = add_gap((0, x), None, cap=8)
        g.ph = (x == 15)
    for t in range(1, 36):
        for x in range(16):
            if t == 35 and x >= 8: break
            if x < 8:
                g = add_gap((t, x), pv_mfma(t - 1, x))
                if t + 1 <= 35: g.mem.append(k_read(T(t + 1), x, v(ring(x), 4)))
                if t == 35: g.mem += v_reads(35, x)
            else:
                g = add_gap((t, x), qk_mfma(t + 1, x - 8))
                g.mem += v_reads(t, x - 8)
            g.ph = (x & 1) == 1
    nvirt = o.get('nvirt', 1 if T(35) < NRES else 2)
    for x in range(8, 12):
        g = add_gap((35, x), pv_mfma(35, x - 8)); g.ph = True
    for x in range(12, 12 + nvirt):
        g = add_gap((35, x), None, cap=8); g.ph = True
    XK1 = 12 + nvirt

    def GG(t, x):
        while (t, x) not in G:
            if x >= 16 and t < 35: t += 1; x -= 16
            else: raise KeyError((t, x))
        return G[(t, x)]

    first_read = {}
    for i in range(2, 12): first_read[f'K{i}'] = G[(i - 1, 0)]
    first_read['V0'] = G[(0, 0)]
    for i in range(1, 12): first_read[f'V{i}'] = G[(i, 8)]
    bar_g = [G[(-1, 15)]] + [G[(t, 7)] for t in o['bars']]
    for n, gb in enumerate(bar_g):
        nxt = bar_g[n + 1] if n + 1 < len(bar_g) else 10 ** 9
        toks = [k for k, gr in first_read.items() if gb < gr <= nxt]
        gaps[gb].sc.append(barrier(tok_r=toks)); gaps[gb].ph = True
        log.append(f'barrier {gaps[gb].name}: {toks}')
    done = set(o['pro'])
    kn = max(int(n[1:]) for n in done if n[0] == 'K') + 1
    vn = max(int(n[1:]) for n in done if n[0] == 'V') + 1
    lastdma = None
    for t in range(0, 12):
        for pos in o['dma_pos']:
            canv = vn <= 11
            if vn >= 8:
                canv = canv and any(G[(vn - 8 + 1, 7)] <= gb <= G[(t, pos)] for gb in bar_g)
            cank = kn <= 11
            if canv and (vn + 2 <= kn or not cank): name = f'V{vn}'; vn += 1
            elif cank: name = f'K{kn}'; kn += 1
            else: continue
            d = dma(name)
            gaps[G[(t, pos)]].sc += d[0]; gaps[G[(t, pos + 1)]].mem.append(d[1]); gaps[G[(t, pos + 2)]].mem.append(d[2])
            cov = max(gb for gb in bar_g if gb < first_read[name])
            assert cov > G[(t, pos + 2)], (name, t, pos)
            log.append(f'dma {name} at {(t, pos)}'); lastdma = (t, pos)
    assert kn == 12 and vn == 12
    qpos = {1: [6], 2: [6, 14], 4: [3, 6, 11, 14]}[o['qb_rate']]
    for s in range(8):
        t = o['qb_start'] + s // o['qb_rate']
        gaps[G[(t, qpos[s % o['qb_rate']])]].mem.append(q_load(1, s))

    items = []
    lastA = {}
    hard = []
    for t in range(36):
        b, i = t // 12, t % 12
        S = Sreg(t); Pr = Preg(t)
        mc = v(V_MC + (b & 1)); l = [V_L + 2 * (b & 1), V_L + 2 * (b & 1) + 1]
        rel0 = GG(t, 1)
        fdeps = []
        shift = 0
        if i == 0:
            Tm = V_T
            m1 = Item([valu('v_max3_f32', v(Tm), v(S), v(S + 1), v(S + 2)),
                       valu('v_max3_f32', v(Tm + 1), v(S + 3), v(S + 4), v(S + 5)),
                       valu('v_max3_f32', v(Tm), v(Tm), v(S + 6), v(S + 7)),
                       valu('v_max3_f32', v(Tm + 1), v(Tm + 1), v(S + 8), v(S + 9))], rel0, rel0)
            m2 = Item([valu('v_max3_f32', v(Tm), v(Tm), v(S + 10), v(S + 11)),
                       valu('v_max3_f32', v(Tm + 1), v(Tm + 1), v(S + 12), v(S + 13)),
                       valu('v_max3_f32', v(Tm), v(Tm), v(S + 14), v(S + 15)),
                       valu('v_max_f32', v(Tm), v(Tm), v(Tm + 1)),
                       valu('v_max_f32', v(Tm + 1), v(Tm), v(Tm + 1))], rel0, rel0 + 1, deps=[(m1, 0)])
            m3 = Item([perm32(v(Tm), v(Tm + 1))], rel0, rel0 + 2, deps=[(m2, 1)])
            m4 = Item([valu('v_max_f32', v(Tm), v(Tm), v(Tm + 1)),
                       valu('v_mul_f32', mc, S_NC, v(Tm))], rel0, rel0 + 2, deps=[(m3, 0)])
            items += [m1, m2, m3, m4]
            fdeps = [(m4, 0)]
            shift = 2
        prevA = [None, None]
        Es = []
        fast = (t == 35 or t == 0)
        for el in range(16):
            if fast:
                df = GG(t, 1 + shift + el // 2 + (0 if el < 8 else 2)) if t == 0 else GG(t, 1 + (el * 11) // 16)
            elif shift:
                df = GG(t, 1 + shift + (el * 14) // 16)
            else:
                df = GG(t, 1 + el)
            if t == 35: cons = GG(35, 8) if el < 8 else len(gaps)
            else: cons = GG(t + 1, 0 if el < 8 else 4)
            df = min(df, cons - 3)
            F = Item(valu('v_fma_f32', v(S + el), v(S + el), S_C, mc), rel0, df, deps=fdeps)
            E = Item(valu('v_exp_f32', v(S + el), v(S + el)), rel0, df + 1, deps=[(F, 0)])
            da = min(df + 3, len(gaps) - 1)
            if i == 0 and el < 2:
                A = Item(valu('v_mov_b32', v(l[el & 1]), v(S + el)), rel0, da, deps=[(E, 1)])
            else:
                A = Item(valu('v_add_f32', v(l[el & 1]), v(l[el & 1]), v(S + el)), rel0, da,
                         deps=[(E, 1)] + ([(prevA[el & 1], 0)] if prevA[el & 1] else []) + ([(lastA[(t - 1, el & 1)], 0)] if el < 2 and i > 0 else []))
            prevA[el & 1] = A
            Es.append(E)
            items += [F, E, A]
            if el & 1:
                Cv = Item(valu('v_cvt_pk_bf16_f32', v(Pr + el // 2), v(S + el - 1), v(S + el)), rel0, df + 2, deps=[(Es[el - 1], 1), (E, 1)])
                items.append(Cv); hard.append((Cv, cons))
        lastA[(t, 0)] = prevA[0]; lastA[(t, 1)] = prevA[1]

    LT = V_LT
    def check_code(b):
        l = [V_L + 2 * (b & 1), V_L + 2 * (b & 1) + 1]
        c1 = [valu('v_add_f32', v(LT), v(l[0]), v(l[1])), valu('v_add_f32', v(LT + 1), v(l[0]), v(l[1]))]
        c2 = [perm32(v(LT), v(LT + 1))]
        c3 = [valu('v_add_f32', v(LT), v(LT), v(LT + 1))]
        if o['slow']:
            c3 += [raw(f'v_cmp_nge_f32 vcc, {hex(o["thresh"])}, {v(LT)}', 'valu', rd=[v(LT)], wr=['vcc'])]
        c3 += [valu('v_rcp_f32', v(LT), v(LT))]
        br = []
        if o['slow']:
            br = [raw(f's_cbranch_vccz L_OK{b}', 'branch', rd=['vcc']),
                  raw(f's_call_b64 {S_RET}, L_SLOW{b}', 'branch'),
                  label(f'L_OK{b}')]
            br[-2].w = 0; br[-1].w = 0
        return c1, c2, c3, br
    def stg_write(i, R0): return ds_write('ds_write_b128', v(V_SW + i), v(R0, 4), 0, w=o['ww'])
    def stg_read(k, D): return ds_read('ds_read_b128', v(D, 4), v(V_SR + (k & 1)), 1024 * k)
    def out_store(b, rho, k, D):
        sm = o['store_mods'][b] if isinstance(o['store_mods'], list) else o['store_mods']
        return buf_store(v(D, 4), v(V_OOFF), S_O, S_ST(b, k >> 1), (k & 1) * 2048 + rho * 128, sm)

    for b in range(2):
        O = V_O[b & 1]
        tl = 12 * b + 11
        c1c, c2c, c3c, brc = check_code(b)
        r0 = GG(tl + 1, 4)
        c1 = Item(c1c, r0, r0 + 2, deps=[(lastA[(tl, 0)], 0), (lastA[(tl, 1)], 0)])
        c2 = Item(c2c, r0, r0 + 3, deps=[(c1, 1)])
        c3 = Item(c3c, r0, r0 + 4, deps=[(c2, 0)])
        c4 = Item(brc, GG(tl + 1, 8), GG(tl + 1, 9), deps=[(c3, 0)])
        items += [c1, c2, c3, c4]
        if b == 0:
            for s in range(8):
                t = o['qc_start'] + s // 2
                gaps[G[(t, 10 if s % 2 == 0 else 13)]].mem.append(q_load(2, s))
        rr = GG(tl + 1, 10)
        span = o['ep_span'][b]
        prev_reads = []
        for rho in range(2):
            ws = []
            for i in range(4):
                j, hh = 2 * rho + (i >> 1), i & 1
                R0 = O + 16 * j + 8 * hh
                k = 4 * rho + i
                d0 = rr + (k * span) // 8; d1 = rr + ((k + 1) * span) // 8
                w = d1 - d0
                muls = [Item(valu('v_mul_f32', v(R0 + q), v(R0 + q), v(LT)), rr, d0 + (q * w) // 12, deps=[(c4, 0), (c3, 1)]) for q in range(8)]
                cv = [Item(valu('v_cvt_pk_bf16_f32', v(R0 + q), v(R0 + 2 * q), v(R0 + 2 * q + 1)), rr, d0 + ((8 + q) * w) // 12,
                           deps=[(muls[2 * q], 0), (muls[2 * q + 1], 0)]) for q in range(4)]
                for q in range(1, 4): cv[q].deps.append((cv[q - 1], 0))
                wi = Item(stg_write(i, R0), rr, d1 + 1, deps=[(cv[3], 1)] + [(p, 0) for p in prev_reads] + ([(ws[-1], 1)] if ws else []), mem=True)
                ws.append(wi)
                items += muls + cv + [wi]
            prev_reads = []
            for k in range(4):
                j, hh = 2 * rho + (k >> 1), k & 1
                D = O + 16 * j + 8 * hh + 4
                dl = rr + ((4 * rho + 4) * span) // 8 + 3 + k
                ri = Item(stg_read(k, D), rr, dl, deps=[(ws[3], 1)] + ([(prev_reads[-1], 0)] if prev_reads else []), mem=True)
                prev_reads.append(ri)
                items.append(ri)
                if not o['nostore']:
                    si = Item(out_store(b, rho, k, D), rr, dl + 6, deps=[(ri, 4)], mem=True)
                    items.append(si)

    if o['stamps']:
        for key in ([(-1, 9), (0, 0), (1, 0), (4, 0), (8, 0), (12, 0), (18, 0), (24, 0), (30, 0), (35, 0)] if not o['fine'] else
                    [(-1, 8), (-1, 15), (0, 0), (1, 0), (2, 0), (4, 0), (8, 0), (12, 0), (24, 0)]):
            gaps[G[key]].sc.append(stamp())
    schedule(gaps, items, log)
    for it, cons in hard: assert it.gap < cons, (it.ins, it.gap, cons)

    M = []
    over = 0
    for gi, g in enumerate(gaps):
        if g.m: M.append(g.m)
        if g.ph: M.append(placeholder())
        M += g.sc
        mem2 = [i for i in g.va if i.kind in MEMK]
        M += g.mem + mem2
        M += [i for i in g.va if i.kind not in MEMK]
        M += g.post
        if g.m and g.used() > g.cap: over += g.used() - g.cap
    log.append(f'slot overflow in MFMA gaps: {over}')

    Tl = []
    e = Tl.append
    O = V_O[0]
    c1c, c2c, c3c, brc = check_code(2)
    for x in c1c + c2c + c3c + brc: e(x)
    if o['tail_pk']: e(valu('v_mov_b32', v(LT + 1), v(LT)))
    for j in range(4): e(pv_mfma(35, 4 + j))
    if o['stamps'] and not o['fine']: e(stamp())
    def ep_tile(j):
        c = []
        for hh in range(2):
            R0 = O + 16 * j + 8 * hh
            if o['tail_pk']:
                for q in range(4):
                    c.append(valu('v_pk_mul_f32', v(R0 + 2 * q, 2), v(R0 + 2 * q, 2), v(LT, 2)))
            else:
                for q in range(8): c.append(valu('v_mul_f32', v(R0 + q), v(R0 + q), v(LT)))
            for q in range(4):
                c.append(valu('v_cvt_pk_bf16_f32', v(R0 + q), v(R0 + 2 * q), v(R0 + 2 * q + 1)))
            c.append(stg_write(2 * (j & 1) + hh, R0))
        return c
    def Dreg(rho, k): return O + 16 * (2 * rho + (k >> 1)) + 8 * (k & 1) + 4
    for x in ep_tile(0) + ep_tile(1): e(x)
    for k in range(4): e(stg_read(k, Dreg(0, k)))
    c2_ = ep_tile(2); c3_ = ep_tile(3)
    n2 = len(c2_) // 2
    for x in c2_[:n2]: e(x)
    e(placeholder())
    if not o['nostore']:
        e(out_store(2, 0, 0, Dreg(0, 0))); e(out_store(2, 0, 1, Dreg(0, 1)))
    for x in c2_[n2:]: e(x)
    if not o['nostore']:
        e(out_store(2, 0, 2, Dreg(0, 2))); e(out_store(2, 0, 3, Dreg(0, 3)))
    for x in c3_: e(x)
    for k in range(4): e(stg_read(k, Dreg(1, k)))
    if not o['nostore']:
        for k in range(4): e(out_store(2, 1, k, Dreg(1, k)))

    tailc = []
    if o['stamps']:
        tailc += [stamp(), wait(vm=0), stamp(), wait(lgkm=0),
                  raw('s_mov_b32 s56, s60'), raw('s_and_b32 s57, s61, 0xffff'), raw('s_mov_b32 s58, 0x100000'), raw('s_mov_b32 s59, 0x20000')]
        n = nst[0]
        assert n <= 16
        if o['dbg'] is not None:
            for k in range(n - 1, -1, -1):
                tailc.append(raw(f's_sub_u32 s{62 + 2 * k}, s{62 + 2 * k}, s62'))
            tailc += [raw('s_mov_b32 s58, 64'), raw('s_lshl_b32 s3, s2, 2'), raw('s_add_u32 s3, s3, s22'), raw(f's_cmp_eq_u32 s3, {o["dbg"]}'), raw('s_cbranch_scc0 L_END', 'branch')]
        for k in range(16):
            tailc.append(raw(f'v_mov_b32 v{48 + k}, ' + (f's{62 + 2 * k}' if k < n else '0'), 'valu', wr=[f'v{48 + k}']))
        tailc += [raw('s_lshl_b32 s3, s2, 8'), raw('s_lshl_b32 s34, s22, 6'), raw('s_add_u32 s3, s3, s34') if o['dbg'] is None else raw('s_mov_b32 s3, 0'),
                  raw('v_mov_b32 v47, 0', 'valu', wr=['v47']), nop(2)]
        for k in range(4):
            tailc.append(raw(f'buffer_store_dwordx4 v[{48 + 4 * k}:{51 + 4 * k}], v47, s[56:59], s3 offen offset:{16 * k}', 'vm_s'))
    body = P + M + Tl + tailc
    body, forced = insert_waits(body, log)
    body, nops = fix_hazards(body, log)
    log.append(f'forced waits {forced}, nop states {nops}')
    text = render(body) + 'L_END:\n  s_endpgm\n'
    if o['slow']:
        for b in range(3):
            sp = slow_path(b, order[b])
            sp, _ = insert_waits(sp, None)
            sp, _ = fix_hazards(sp, None)
            text += render(sp)
    return text, log, gaps

def slow_path(b, order):
    L = []
    e = L.append
    par = b & 1
    O = V_O[par]; Q = A_Q[par]
    SS, SP, SF = 96, 88, 112
    MX, MC, LL, TT = 80, 81, 82, 83
    VA = V_LT + 1
    e(label(f'L_SLOW{b}'))
    e(wait(lgkm=0)); e(nop(8)); e(nop(8))
    if b < 2:
        e(raw('s_load_dwordx2 s[52:53], s[0:1], 40', 'smem'))
        e(raw(f'v_mbcnt_lo_u32_b32 {v(VA)}, -1, 0', 'valu', wr=[v(VA)]))
        e(raw(f'v_mbcnt_hi_u32_b32 {v(VA)}, -1, {v(VA)}', 'valu', rd=[v(VA)], wr=[v(VA)]))
        e(valu('v_lshlrev_b32', v(VA), '4', v(VA)))
        e(salu('s_lshl_b32', 's34', 's2', '2'))
        e(salu('s_add_u32', 's34', 's34', S_WAVE))
        e(salu('s_mul_i32', 's34', 's34', '0x3000', scc=False))
        e(salu('s_mov_b32', 's54', '0x3000', scc=False))
        e(salu('s_mov_b32', 's55', '0x20000', scc=False))
        e(salu('s_mov_b32', 's35', '0x2000', scc=False))
        e(wait(lgkm=0))
        e(salu('s_add_u32', 's52', 's52', 's34'))
        e(salu('s_addc_u32', 's53', 's53', '0'))
        e(nop(4))
        for k in range(12):
            e(buf_store(v(80 + 4 * k, 4), v(VA), S_WS, ['0', 's44', 's35'][k >> 2], (k & 3) * 1024))
        e(wait(vm=0))
    def qk(i):
        for s in range(8):
            if s % 4 == 0:
                for s2 in range(s, s + 4):
                    e(k_read(i, s2, v(SF + 4 * (s2 % 4), 4)))
            e(mfma(v(SS, 16), v(SF + 4 * (s % 4), 4), a(Q + 4 * s, 4), '0' if s == 0 else v(SS, 16)))
            if s % 4 == 3: e(nop(8))
    for n, i in enumerate(order):
        qk(i)
        for q in range(8):
            if n == 0 and q == 0:
                e(valu('v_max_f32', v(MX), v(SS), v(SS + 1)))
            else:
                e(valu('v_max3_f32', v(MX), v(MX), v(SS + 2 * q), v(SS + 2 * q + 1)))
    e(valu('v_mov_b32', v(TT), v(MX)))
    e(perm32(v(MX), v(TT)))
    e(valu('v_max_f32', v(MX), v(MX), v(TT)))
    e(valu('v_mul_f32', v(MC), S_NC, v(MX)))
    e(valu('v_mov_b32', v(LL), '0'))
    for n, i in enumerate(order):
        qk(i)
        for el in range(16): e(valu('v_fma_f32', v(SS + el), v(SS + el), S_C, v(MC)))
        for el in range(16): e(valu('v_exp_f32', v(SS + el), v(SS + el)))
        for el in range(16): e(valu('v_add_f32', v(LL), v(LL), v(SS + el)))
        for q in range(8): e(valu('v_cvt_pk_bf16_f32', v(SP + q), v(SS + 2 * q), v(SS + 2 * q + 1)))
        for ks in range(2):
            if b == 2 and n == 11 and ks == 1: break
            if i >= NRES:
                for j in range(4):
                    for x in v_read(i, j, ks, 'v', SF + 4 * j): e(x)
            for j in range(4):
                Oj = v(O + 16 * j, 16)
                A = a(A_VR + 32 * i + 4 * (4 * ks + j), 4) if i < NRES else v(SF + 4 * j, 4)
                e(mfma(Oj, A, v(SP + 4 * ks, 4), '0' if (n == 0 and ks == 0) else Oj))
            e(nop(8))
    e(valu('v_mov_b32', v(TT), v(LL)))
    e(perm32(v(LL), v(TT)))
    e(valu('v_add_f32', v(V_LT), v(LL), v(TT)))
    e(valu('v_rcp_f32', v(V_LT), v(V_LT)))
    e(nop(8)); e(nop(8))
    if b < 2:
        for k in range(12):
            e(buf_load(v(80 + 4 * k, 4), v(VA), S_WS, ['0', 's44', 's35'][k >> 2], (k & 3) * 1024))
        e(wait(vm=0))
    e(raw(f's_setpc_b64 {S_RET}', 'branch'))
    return L

HEADER = open('standalone__gqa_softmax__near_ridge.s.ref').read().split('; Override launch')[0]

def full(opt):
    text, log, gaps = gen(opt)
    s = HEADER + '; @launch grid=(256,1,1) block=(256,1,1) lds=163840\n'
    s += f'''.amdgcn_target "amdgcn-amd-amdhsa--gfx950"
.text
.globl {KNAME}
.p2align 8
.type {KNAME},@function
{KNAME}:
'''
    s += text
    s += f'''.section .rodata,"a"
.p2align 6
.amdhsa_kernel {KNAME}
  .amdhsa_next_free_vgpr 512
  .amdhsa_next_free_sgpr 102
  .amdhsa_accum_offset 256
  .amdhsa_group_segment_fixed_size 0
  .amdhsa_kernarg_size 48
  .amdhsa_user_sgpr_count 2
  .amdhsa_user_sgpr_kernarg_segment_ptr 1
  .amdhsa_system_sgpr_workgroup_id_x 1
.end_amdhsa_kernel
'''
    return s, log, gaps

if __name__ == '__main__':
    import json
    out = sys.argv[1]
    opt = json.loads(sys.argv[2]) if len(sys.argv) > 2 else {}
    s, log, gaps = full(opt)
    open(out, 'w').write(s)
    for l in log: print(l)
    print('used per gap:')
    line = ''
    for g in gaps:
        line += f'{g.used():x}' if g.m else f'({g.used()})'
        if g.name.endswith('15)'): print(g.name, line); line = ''
    print(line)
```
